```python
import torch

def _softmax(x, axis=-1):
    return torch.softmax(x, dim=axis)

def _gelu(x):
    return torch.nn.functional.gelu(x, approximate='tanh')

def _silu(x):
    return torch.nn.functional.silu(x)

def _sigmoid(x):
    return torch.sigmoid(x)

def _layernorm(x, axis=-1, eps=1e-05):
    m = x.mean(dim=axis, keepdim=True)
    v = x.var(dim=axis, keepdim=True, unbiased=False)
    return (x - m) / torch.sqrt(v + eps)

def _scatter_add(tgt, idx, src, axis=0):
    return tgt.clone().index_add_(axis, idx, src)

def _segment_sum(src, seg, n):
    out = torch.zeros((n,) + src.shape[1:], dtype=src.dtype)
    return out.index_add_(0, seg, src)

def _pad(x, pw):
    flat = tuple((v for pair in reversed(pw) for v in pair))
    return torch.nn.functional.pad(x, flat)
kernel_name = 'adaLN_cond__ssm_conv_s4__glu_gated_glu__prompt'

def setup_inputs():

    _w = lambda a: (lambda t: t.to(torch.bfloat16) if t.is_floating_point() else t)(torch.as_tensor(a))

    def _A_setup():
        B, L, D, N = (1, 2048, 448, 256)
        A_re = -(lambda _x: torch.exp(torch.as_tensor(_x)))((lambda *s: torch.randn(*s, dtype=torch.bfloat16) * 3.2)(D, N))
        A_im = torch.pi * (lambda *s: torch.randn(*s, dtype=torch.bfloat16) * 0.2)(D, N)
        B_re = (lambda *s: torch.randn(*s, dtype=torch.bfloat16) * 0.2)(D, N)
        B_im = (lambda *s: torch.randn(*s, dtype=torch.bfloat16) * 0.2)(D, N)
        C_re = (lambda *s: torch.randn(*s, dtype=torch.bfloat16) * 0.2)(D, N)
        C_im = (lambda *s: torch.randn(*s, dtype=torch.bfloat16) * 0.2)(D, N)
        log_dt = (lambda *s: torch.randn(*s, dtype=torch.bfloat16) * 0.2)(D) * 0.5 - 4.0
        Dskip = (lambda *s: torch.randn(*s, dtype=torch.bfloat16) * 0.2)(D)
        return {'u': _w((lambda *s: torch.randn(*s, dtype=torch.bfloat16) * 0.05)(B, L, D)), 'A_re': _w(A_re), 'A_im': _w(A_im), 'B_re': _w(B_re), 'B_im': _w(B_im), 'C_re': _w(C_re), 'C_im': _w(C_im), 'log_dt': _w(log_dt), 'Dskip': _w(Dskip)}
    _A_in = _A_setup()

    def _B_setup():
        B, S, D, F = (1, 2048, 448, 1792)
        return {'x': _w((lambda *s: torch.randn(*s, dtype=torch.bfloat16) * 0.05)(B, S, D)), 'w_gate': _w((lambda *s: torch.randn(*s, dtype=torch.bfloat16) * 0.4)(D, F)), 'w_up': _w((lambda *s: torch.randn(*s, dtype=torch.bfloat16) * 0.2)(D, F)), 'w_down': _w((lambda *s: torch.randn(*s, dtype=torch.bfloat16) * 0.2)(F, D))}
    _B_in = _B_setup()
    return {'A_u': _A_in['u'], 'A_A_re': _A_in['A_re'], 'A_A_im': _A_in['A_im'], 'A_B_re': _A_in['B_re'], 'A_B_im': _A_in['B_im'], 'A_C_re': _A_in['C_re'], 'A_C_im': _A_in['C_im'], 'A_log_dt': _A_in['log_dt'], 'A_Dskip': _A_in['Dskip'], 'B_x': _B_in['x'], 'B_w_gate': _B_in['w_gate'], 'B_w_up': _B_in['w_up'], 'B_w_down': _B_in['w_down'], 'c': _w((lambda *s: torch.randn(*s, dtype=torch.bfloat16) * 0.4)(1, 448) * 8.0), 'w_mod': _w((lambda *s: torch.randn(*s, dtype=torch.bfloat16) * 0.4)(448, 6 * 448) * 448 ** (-0.5) * 8.0)}

def reference(A_u, A_A_re, A_A_im, A_B_re, A_B_im, A_C_re, A_C_im, A_log_dt, A_Dskip, B_x, B_w_gate, B_w_up, B_w_down, c, w_mod):

    def _A_ref(u, A_re, A_im, B_re, B_im, C_re, C_im, log_dt, Dskip):
        Bsz, L, D = u.shape
        dt = torch.exp(log_dt)[:, None]
        A = A_re + 1j * A_im
        Bc = B_re + 1j * B_im
        Cc = C_re + 1j * C_im
        logdA = dt * A
        dB = dt * Bc
        l = (lambda x, dt: x.to(dt))(torch.arange(L), A_re.dtype)
        P = torch.exp(logdA[:, :, None] * l[None, None, :])
        K = torch.einsum('dn,dnl,dn->dl', Cc, P, dB).real
        L2 = 2 * L
        Kp = _pad(K, ((0, 0), (0, L)))
        up = (lambda x, *d: x.permute(*d))(u, 0, 2, 1)
        up = _pad(up, ((0, 0), (0, 0), (0, L)))
        Kf = (lambda x, axes=(-2, -1): torch.fft.rfft2(x.float(), dim=axes))(Kp[:, None, :], axes=(-2, -1))
        Uf = (lambda x, axes=(-2, -1): torch.fft.rfft2(x.float(), dim=axes))(up[:, :, None, :], axes=(-2, -1))
        Yf = Uf * Kf[None, :, :, :]
        y = (lambda x, s, axes=(-2, -1): torch.fft.irfft2(x, s=s, dim=axes).to(torch.bfloat16))(Yf, (1, L2), axes=(-2, -1))[:, :, 0, :L]
        y = (lambda x, *d: x.permute(*d))(y, 0, 2, 1) + u * Dskip[None, None, :]
        return y

    def _B_ref(x, w_gate, w_up, w_down):
        g = torch.einsum('bsd,df->bsf', x, w_gate)
        u = torch.einsum('bsd,df->bsf', x, w_up)
        h = _sigmoid(g) * u
        return torch.einsum('bsf,fd->bsd', h, w_down)
    x = A_u
    mod = (_silu(c) @ w_mod).reshape(c.shape[0], 6, 1, -1)
    sa, ca, ga, sb, cb, gb = (mod[:, 0].clone(), mod[:, 1].clone(), mod[:, 2].clone(), mod[:, 3].clone(), mod[:, 4].clone(), mod[:, 5].clone())
    h = _layernorm(x, axis=-1) * (1 + ca) + sa
    x = x + ga * _A_ref(h, A_A_re, A_A_im, A_B_re, A_B_im, A_C_re, A_C_im, A_log_dt, A_Dskip)
    h = _layernorm(x, axis=-1) * (1 + cb) + sb
    x = x + gb * _B_ref(h, B_w_gate, B_w_up, B_w_down)
    return x
```

```python
import re

TRANS = ('v_exp_f32', 'v_log_f32', 'v_rcp_f32', 'v_rsq_f32', 'v_sqrt_f32', 'v_sin_f32', 'v_cos_f32', 'v_rcp_iflag_f32')
_reg_re = re.compile(r'\b([vsa])(\d+)\b|\b([vsa])\[(\d+):(\d+)\]|\b(vcc|exec|m0|scc)\b|\b(vcc_lo|vcc_hi|exec_lo|exec_hi)\b')

def regs_of(text):
    out = []
    for m in _reg_re.finditer(text):
        if m.group(1): out.append((m.group(1), int(m.group(2))))
        elif m.group(3): out += [(m.group(3), i) for i in range(int(m.group(4)), int(m.group(5)) + 1)]
        elif m.group(6): out.append((m.group(6), 0))
        elif m.group(7): out.append((m.group(7).split('_')[0], 0))
    return out

def split_ops(s):
    ops, depth, cur = [], 0, ''
    for ch in s:
        if ch == '[': depth += 1
        if ch == ']': depth -= 1
        if ch == ',' and depth == 0:
            ops.append(cur.strip()); cur = ''
        else: cur += ch
    if cur.strip(): ops.append(cur.strip())
    return ops

class Ins:
    def __init__(self, text):
        self.text = text
        t = text.split(';')[0].strip()
        self.label = None; self.op = None
        self.dst = set(); self.src = set(); self.kind = None
        self.srcA = set(); self.srcC = set(); self.data = set()
        self.target = None; self.ws = 1
        if not t or t.startswith('.'):
            self.kind = 'dir'; self.ws = 0; return
        if t.endswith(':'):
            self.label = t[:-1]; self.kind = 'label'; self.ws = 0; return
        parts = t.split(None, 1)
        op = parts[0]; rest = parts[1] if len(parts) > 1 else ''
        self.op = op
        ops = split_ops(rest)
        if ops:
            last = ops[-1]
            mm = re.match(r'^(\S+(?:\s*\[[^\]]*\])?)(.*)$', last)
            mods = mm.group(2); ops[-1] = mm.group(1)
        else: mods = ''
        self.mods = mods; self.ops = ops
        R = lambda i: set(regs_of(ops[i])) if i < len(ops) else set()
        allsrc = lambda a: set().union(*[R(i) for i in range(a, len(ops))]) if len(ops) > a else set()
        base = re.sub(r'_(e32|e64|dpp|sdwa)$', '', op)
        self.base = base
        self.dpp = op.endswith('_dpp') or bool(re.search(r'quad_perm|row_|wave_', mods))
        if op == 's_nop':
            self.kind = 'nop'; self.ws = int(ops[0], 0) + 1
        elif op.startswith('s_cbranch') or op == 's_branch':
            self.kind = 'branch'; self.target = ops[0]
        elif op in ('s_endpgm',):
            self.kind = 'end'
        elif op.startswith('s_load') or op.startswith('s_buffer_load') or op.startswith('s_memtime') or op.startswith('s_memrealtime'):
            self.kind = 'smem'; self.dst = R(0); self.src = allsrc(1)
        elif op.startswith('s_'):
            self.kind = 'salu'
            if op.startswith('s_cmp') or op in ('s_waitcnt', 's_barrier', 's_setprio', 's_sleep', 's_bitcmp0_b32', 's_bitcmp1_b32'):
                self.src = allsrc(0)
            else:
                self.dst = R(0); self.src = allsrc(1)
                if 'saveexec' in op: self.dst |= {('exec', 0)}
        elif op.startswith('v_mfma'):
            self.kind = 'mfma'; self.dst = R(0); self.srcA = R(1) | R(2); self.srcC = R(3); self.src = self.srcA | self.srcC
            self.passes = 8 if '32x32x16' in op else (4 if '16x16x32' in op else 16)
        elif op.startswith('v_'):
            self.kind = 'valu'
            self.dst = R(0); self.src = allsrc(1)
            if base.startswith('v_permlane') and 'swap' in base:
                self.dst = R(0) | R(1); self.src = R(0) | R(1)
            if base in ('v_fmac_f32', 'v_dot2c_f32_bf16', 'v_pk_fmac_f16', 'v_writelane_b32') or self.dpp:
                self.src |= R(0)
            if base in ('v_add_co_u32', 'v_sub_co_u32', 'v_addc_co_u32', 'v_subb_co_u32', 'v_mad_u64_u32', 'v_div_scale_f32'):
                self.dst = R(0) | R(1); self.src = allsrc(2)
            if base.startswith('v_cmpx'): self.dst |= {('exec', 0)}
        elif op.startswith('ds_'):
            self.kind = 'ds'
            if 'read' in op or 'bpermute' in op or 'permute' in op or 'swizzle' in op or '_rtn' in op:
                self.dst = R(0); self.src = allsrc(1)
            else:
                self.src = allsrc(0)
        elif op.startswith('buffer_') or op.startswith('global_') or op.startswith('flat_'):
            self.kind = 'vmem'
            self.lds = bool(re.search(r'\blds\b', mods)) or '_lds_' in op
            if op in ('buffer_inv', 'buffer_wbl2'):
                pass
            elif 'load' in op and not self.lds:
                self.dst = R(0); self.src = allsrc(1)
                if 'd16' in op: self.src |= R(0)
            elif 'load' in op:
                self.src = allsrc(0) | {('m0', 0)}
            elif 'atomic' in op:
                self.src = allsrc(0)
                if 'sc0' in mods: self.dst = R(0)
            else:
                self.src = allsrc(0)
                di = 0 if op.startswith('buffer_') else 1
                if re.search(r'x[34]$', op): self.data = R(di)
        else:
            raise ValueError('unknown op ' + text)

def need(P, C):
    n = 0
    isv = lambda s: {r for r in s if r[0] in 'va'}
    iss = lambda s: {r for r in s if r[0] in ('s', 'vcc')}
    if P.kind == 'valu':
        vw = isv(P.dst); sw = iss(P.dst)
        if C.kind == 'mfma' and vw & C.src: n = max(n, 2)
        if C.kind == 'valu':
            if C.dpp and vw & C.src: n = max(n, 2)
            if C.base.startswith('v_permlane') and vw & C.src: n = max(n, 2)
            if C.base in ('v_readlane_b32', 'v_readfirstlane_b32') and vw & C.src: n = max(n, 1)
            if sw & C.src:
                n = max(n, 4 if C.base in ('v_readlane_b32', 'v_writelane_b32', 'v_div_fmas_f32') else 2)
            if ('vcc', 0) in sw and C.base == 'v_div_fmas_f32': n = max(n, 4)
        if P.base in TRANS and vw & C.src and not (C.kind == 'valu' and C.base in TRANS): n = max(n, 1)
        if P.base.startswith('v_dot'):
            if C.kind in ('valu', 'mfma', 'ds', 'vmem'):
                if C.kind == 'valu' and C.base == P.base:
                    srcab = set(regs_of(C.ops[1])) | set(regs_of(C.ops[2]))
                    if vw & srcab: n = max(n, 3)
                elif vw & (C.src | C.dst): n = max(n, 3)
        if C.kind == 'vmem' and sw & C.src: n = max(n, 5)
        if C.kind in ('salu', 'smem', 'branch') and sw & C.src: n = max(n, 1)
        if ('exec', 0) in P.dst:
            if C.kind == 'mfma': n = max(n, 4)
            if C.kind == 'valu': n = max(n, 5 if C.dpp else 4)
        if 'sdwa' in P.op and 'dst_sel:DWORD' not in P.mods and vw & (C.src | C.dst): n = max(n, 1)
    if P.kind == 'mfma':
        p = P.passes
        t = {4: (6, 8, 3), 8: (10, 12, 7), 16: (18, 20, 15)}[p]
        if C.kind == 'mfma':
            if P.dst & C.srcA: n = max(n, t[1])
            if P.dst & C.srcC and not (P.dst == C.srcC and C.passes == p): n = max(n, t[0])
            if P.dst & C.dst and not (P.dst == C.srcC and C.passes == p): n = max(n, t[0])
        elif C.kind in ('valu', 'ds', 'vmem'):
            if P.dst & (C.src | C.dst): n = max(n, t[1])
            if P.srcC & C.dst: n = max(n, t[2])
    if P.kind == 'salu' and ('m0', 0) in P.dst and C.kind == 'vmem' and ('m0', 0) in C.src: n = max(n, 1)
    if P.kind == 'vmem' and P.data and P.data & C.dst:
        n = max(n, 2 if C.kind == 'valu' else 1)
    return n

class Prog:
    def __init__(self):
        self.lines = []
    def __call__(self, text):
        for l in text.split('\n'):
            if l.strip(): self.lines.append(l.rstrip())
    def fix(self, verbose=False):
        ins = [Ins(l) for l in self.lines]
        changed = True; added = 0
        while changed:
            changed = False
            labels = {x.label: i for i, x in enumerate(ins) if x.label}
            preds = [[] for _ in ins]
            for i, x in enumerate(ins):
                if i + 1 < len(ins) and not (x.kind == 'end' or x.op == 's_branch'): preds[i + 1].append(i)
                if x.kind == 'branch' and x.target in labels: preds[labels[x.target]].append(i)
            for i, C in enumerate(ins):
                if C.kind in ('dir', 'label', 'nop', 'end'): continue
                worst = 0
                stack = [(p, 0) for p in preds[i]]; seen = {}
                while stack:
                    j, dist = stack.pop()
                    if dist >= 20 or seen.get(j, 99) <= dist: continue
                    seen[j] = dist
                    P = ins[j]
                    if P.kind not in ('dir', 'label', 'nop', 'end'):
                        k = need(P, C) - dist
                        if k > worst: worst = k; why = P.text
                    for p in preds[j]: stack.append((p, dist + P.ws))
                if worst > 0:
                    if verbose: print(f'pad {worst}: [{why.strip()}] -> [{C.text.strip()}]')
                    while worst > 0:
                        k = min(worst, 16)
                        ins.insert(i, Ins(f'  s_nop {k-1}')); worst -= k; added += 1
                    changed = True
                    break
        self.lines = [x.text for x in ins]
        return added
    def text(self): return '\n'.join(self.lines) + '\n'
```

```python
import struct, math
from asmlib import Prog

L, D, F, NM = 2048, 448, 1792, 256
WS_MOD = 0
WS_XX = 0x4000;  TS16 = 448 * 64 + 128
WS_KR = 0x390000; KRP = 4224
WS_X1T = 0x560000; TS128 = 448 * 256 + 256
WS_WG = 0x730000
WS_WD = 0xA60000
WS_H = 0xBF0000
WS_END = 0x12F0000
KA = dict(x=0, A_re=8, A_im=16, B_re=24, B_im=32, C_re=40, C_im=48, log_dt=56, Dskip=64, B_x=72,
          w_gate=80, w_up=88, w_down=96, c=104, w_mod=112, out=120, dbg=128, ws=136)

def f2u(x): return struct.unpack('<I', struct.pack('<f', x))[0]
def u2f(u): return struct.unpack('<f', struct.pack('<I', u))[0]
def fh(x): return f'0x{f2u(x):08x}'
LOG2E = 1.4426950408889634
INV2PI = 1.0 / (2 * math.pi)
INV2PI_HI = u2f(f2u(INV2PI)); INV2PI_LO = INV2PI - INV2PI_HI

def srd(A, d, base, nbytes):
    A(f"""  s_mov_b32 s{d}, s{base}
  s_and_b32 s{d+1}, s{base+1}, 0xffff
  s_mov_b32 s{d+2}, {nbytes:#x}
  s_mov_b32 s{d+3}, 0x20000""")

def v(a, n=1): return f'v{a}' if n == 1 else f'v[{a}:{a+n-1}]'
def a_(a, n=1): return f'a{a}' if n == 1 else f'a[{a}:{a+n-1}]'
def s(a, n=1): return f's{a}' if n == 1 else f's[{a}:{a+n-1}]'

def cmul(A, P, X, W):
    A(f"  v_pk_mul_f32 {v(P,2)}, {v(X,2)}, {v(W,2)} op_sel:[0,0] op_sel_hi:[1,0]")
    A(f"  v_pk_fma_f32 {v(P,2)}, {v(X,2)}, {v(W,2)}, {v(P,2)} op_sel:[1,1,0] op_sel_hi:[0,1,1] neg_lo:[1,0,0]")

def header(A, name):
    A(f""".globl {name}
.p2align 8
.type {name},@function
{name}:""")

def descriptor(name, vgpr, sgpr, accum=None):
    if accum is None: accum = (vgpr + 3) // 4 * 4
    return f""".amdhsa_kernel {name}
  .amdhsa_next_free_vgpr {vgpr}
  .amdhsa_next_free_sgpr {sgpr}
  .amdhsa_accum_offset {accum}
  .amdhsa_group_segment_fixed_size 0
  .amdhsa_kernarg_size 144
  .amdhsa_user_sgpr_count 2
  .amdhsa_user_sgpr_kernarg_segment_ptr 1
  .amdhsa_system_sgpr_workgroup_id_x 1
  .amdhsa_float_denorm_mode_32 3
.end_amdhsa_kernel
"""

def unpack2(A, dlo, dhi, src):
    A(f"  v_lshlrev_b32 v{dlo}, 16, v{src}")
    A(f"  v_and_b32 v{dhi}, 0xffff0000, v{src}")

def row16_sum(A, r, op='v_add_f32'):
    for m in ('quad_perm:[1,0,3,2]', 'quad_perm:[2,3,0,1]', 'row_half_mirror', 'row_mirror'):
        A(f"  {op}_dpp v{r}, v{r}, v{r} {m} row_mask:0xf bank_mask:0xf")
```

```python
import sys, importlib
sys.path.insert(0, 'gen')
from common import *
NAME = 'adaLN_cond__ssm_conv_s4__glu_gated_glu__prompt'
def generate(mods, out, verbose=False):
    ref = open(f'cdna_kernels/{NAME}.s.ref').read().split('\n')
    head = [l for l in ref if l.startswith(';') and '@launch' not in l and 'Override launch' not in l and 'grid=ceil' not in l]
    infos = []; bodies = []
    for m in mods:
        A = Prog(); info = importlib.import_module(m).build(A)
        n = A.fix(verbose); infos.append(info); bodies.append(A.text())
        print(m, 'nops added', n, 'lines', len(A.lines))
    txt = '\n'.join(head) + '\n'
    for i in infos:
        txt += f"; @launch kernel={i['name']} grid=({i['grid']},1,1) block=({i['block']},1,1) lds={i['lds']}\n"
    txt += '.amdgcn_target "amdgcn-amd-amdhsa--gfx950"\n.text\n'
    txt += ''.join(bodies)
    txt += '.section .rodata,"a"\n'
    for i in infos:
        txt += '.p2align 6\n' + descriptor(i['name'], i['vgpr'], i['sgpr'], i.get('accum'))
    open(out, 'w').write(txt)
if __name__ == '__main__':
    mods = sys.argv[2:]
    generate(mods, sys.argv[1], verbose=False)
```

```python
import struct, math
from asmlib import Prog

L, D, F, NM = 2048, 448, 1792, 256
WS_MOD = 0
WS_FLAG = 0x3000
WS_XX = 0x4000;  TS16 = 448 * 64 + 128
WS_KR = 0x1000000+0x300000; KRP = 4224
WS_X1T = 0x560000; TS128 = 448 * 256 + 256
WS_WG = 0x730000
WS_WD = 0xA60000
WS_H = 0xBF0000
WS_END = 0x1300000 + 448*2*4224
KA = dict(x=0, A_re=8, A_im=16, B_re=24, B_im=32, C_re=40, C_im=48, log_dt=56, Dskip=64, B_x=72,
          w_gate=80, w_up=88, w_down=96, c=104, w_mod=112, out=120, dbg=128, ws=136)

def f2u(x): return struct.unpack('<I', struct.pack('<f', x))[0]
def u2f(u): return struct.unpack('<f', struct.pack('<I', u))[0]
def fh(x): return f'0x{f2u(x):08x}'
LOG2E = 1.4426950408889634
INV2PI = 1.0 / (2 * math.pi)
INV2PI_HI = u2f(f2u(INV2PI)); INV2PI_LO = INV2PI - INV2PI_HI

def srd(A, d, base, nbytes):
    A(f"""  s_mov_b32 s{d}, s{base}
  s_and_b32 s{d+1}, s{base+1}, 0xffff
  s_mov_b32 s{d+2}, {nbytes:#x}
  s_mov_b32 s{d+3}, 0x20000""")

def v(a, n=1): return f'v{a}' if n == 1 else f'v[{a}:{a+n-1}]'
def a_(a, n=1): return f'a{a}' if n == 1 else f'a[{a}:{a+n-1}]'
def s(a, n=1): return f's{a}' if n == 1 else f's[{a}:{a+n-1}]'

def cmul(A, P, X, W):
    A(f"  v_pk_mul_f32 {v(P,2)}, {v(X,2)}, {v(W,2)} op_sel:[0,0] op_sel_hi:[1,0]")
    A(f"  v_pk_fma_f32 {v(P,2)}, {v(X,2)}, {v(W,2)}, {v(P,2)} op_sel:[1,1,0] op_sel_hi:[0,1,1] neg_lo:[1,0,0]")

def header(A, name):
    A(f""".globl {name}
.p2align 8
.type {name},@function
{name}:""")

def descriptor(name, vgpr, sgpr, accum=None):
    if accum is None: accum = (vgpr + 3) // 4 * 4
    return f""".amdhsa_kernel {name}
  .amdhsa_next_free_vgpr {vgpr}
  .amdhsa_next_free_sgpr {sgpr}
  .amdhsa_accum_offset {accum}
  .amdhsa_group_segment_fixed_size 0
  .amdhsa_kernarg_size 144
  .amdhsa_user_sgpr_count 2
  .amdhsa_user_sgpr_kernarg_segment_ptr 1
  .amdhsa_system_sgpr_workgroup_id_x 1
  .amdhsa_float_denorm_mode_32 3
.end_amdhsa_kernel
"""

def unpack2(A, dlo, dhi, src):
    A(f"  v_lshlrev_b32 v{dlo}, 16, v{src}")
    A(f"  v_and_b32 v{dhi}, 0xffff0000, v{src}")

def row16_sum(A, r, op='v_add_f32'):
    for m in ('quad_perm:[1,0,3,2]', 'quad_perm:[2,3,0,1]', 'row_half_mirror', 'row_mirror'):
        A(f"  {op}_dpp v{r}, v{r}, v{r} {m} row_mask:0xf bank_mask:0xf")

import os
PROF = int(os.environ.get('PROF', '0'))
WS_PROF = 0x1800000
_stamp_n = [0]
def stamp_reset(): _stamp_n[0] = 0
def stamp(A, wait=True):
    if not PROF: return
    i = _stamp_n[0]; _stamp_n[0] += 1
    if i == 0: A("  s_memrealtime s[58:59]\n  v_lshrrev_b32 v255, 6, v0" if False else "  s_memrealtime s[58:59]")
    A(f"  s_memtime s[{60+2*i}:{61+2*i}]")
    if wait: A("  s_waitcnt lgkmcnt(0)")
def stamp_flush(A, kidx, wave_sgpr, srd_ws=16, vt=(2, 3)):
    if not PROF: return
    n = _stamp_n[0]
    A(f"""  s_memrealtime s[56:57]
  s_waitcnt lgkmcnt(0) vmcnt(0)
  s_lshl_b32 s55, s2, 2
  s_add_u32 s55, s55, s{wave_sgpr}
  s_lshl_b32 s55, s55, 6
  s_add_u32 s55, s55, {WS_PROF + kidx*1024*256}
  s_mov_b32 s{srd_ws+2}, 0x2000000
  v_mov_b32 v{vt[0]}, 0""")
    vals = ['s58', 's56'] + [f's{60+2*i}' for i in range(n)]
    for j, sv in enumerate(vals):
        A(f"  v_mov_b32 v{vt[1]}, {sv}\n  buffer_store_dword v{vt[1]}, v{vt[0]}, s[{srd_ws}:{srd_ws+3}], s55 offen offset:{4*j}")
```

```python
import re

TRANS = ('v_exp_f32', 'v_log_f32', 'v_rcp_f32', 'v_rsq_f32', 'v_sqrt_f32', 'v_sin_f32', 'v_cos_f32', 'v_rcp_iflag_f32')
_reg_re = re.compile(r'\b([vsa])(\d+)\b|\b([vsa])\[(\d+):(\d+)\]|\b(vcc|exec|m0|scc)\b|\b(vcc_lo|vcc_hi|exec_lo|exec_hi)\b')

def regs_of(text):
    out = []
    for m in _reg_re.finditer(text):
        if m.group(1): out.append((m.group(1), int(m.group(2))))
        elif m.group(3): out += [(m.group(3), i) for i in range(int(m.group(4)), int(m.group(5)) + 1)]
        elif m.group(6): out.append((m.group(6), 0))
        elif m.group(7): out.append((m.group(7).split('_')[0], 0))
    return out

def split_ops(s):
    ops, depth, cur = [], 0, ''
    for ch in s:
        if ch == '[': depth += 1
        if ch == ']': depth -= 1
        if ch == ',' and depth == 0:
            ops.append(cur.strip()); cur = ''
        else: cur += ch
    if cur.strip(): ops.append(cur.strip())
    return ops

class Ins:
    def __init__(self, text):
        self.text = text
        t = text.split(';')[0].strip()
        self.label = None; self.op = None
        self.dst = set(); self.src = set(); self.kind = None
        self.srcA = set(); self.srcC = set(); self.data = set()
        self.target = None; self.ws = 1
        if not t or t.startswith('.'):
            self.kind = 'dir'; self.ws = 0; return
        if t.endswith(':'):
            self.label = t[:-1]; self.kind = 'label'; self.ws = 0; return
        parts = t.split(None, 1)
        op = parts[0]; rest = parts[1] if len(parts) > 1 else ''
        self.op = op
        ops = split_ops(rest)
        if ops:
            last = ops[-1]
            mm = re.match(r'^(\S+(?:\s*\[[^\]]*\])?)(.*)$', last)
            mods = mm.group(2); ops[-1] = mm.group(1)
        else: mods = ''
        self.mods = mods; self.ops = ops
        R = lambda i: set(regs_of(ops[i])) if i < len(ops) else set()
        allsrc = lambda a: set().union(*[R(i) for i in range(a, len(ops))]) if len(ops) > a else set()
        base = re.sub(r'_(e32|e64|dpp|sdwa)$', '', op)
        self.base = base
        self.dpp = op.endswith('_dpp') or bool(re.search(r'quad_perm|row_|wave_', mods))
        if op == 's_nop':
            self.kind = 'nop'; self.ws = int(ops[0], 0) + 1
        elif op.startswith('s_cbranch') or op == 's_branch':
            self.kind = 'branch'; self.target = ops[0]
        elif op in ('s_endpgm',):
            self.kind = 'end'
        elif op.startswith('s_load') or op.startswith('s_buffer_load') or op.startswith('s_memtime') or op.startswith('s_memrealtime'):
            self.kind = 'smem'; self.dst = R(0); self.src = allsrc(1)
        elif op.startswith('s_'):
            self.kind = 'salu'
            if op.startswith('s_cmp') or op in ('s_waitcnt', 's_barrier', 's_setprio', 's_sleep', 's_bitcmp0_b32', 's_bitcmp1_b32'):
                self.src = allsrc(0)
            else:
                self.dst = R(0); self.src = allsrc(1)
                if 'saveexec' in op: self.dst |= {('exec', 0)}
        elif op.startswith('v_mfma'):
            self.kind = 'mfma'; self.dst = R(0); self.srcA = R(1) | R(2); self.srcC = R(3); self.src = self.srcA | self.srcC
            self.passes = 8 if '32x32x16' in op else (4 if '16x16x32' in op else 16)
        elif op.startswith('v_'):
            self.kind = 'valu'
            self.dst = R(0); self.src = allsrc(1)
            if base.startswith('v_permlane') and 'swap' in base:
                self.dst = R(0) | R(1); self.src = R(0) | R(1)
            if base in ('v_fmac_f32', 'v_dot2c_f32_bf16', 'v_pk_fmac_f16', 'v_writelane_b32') or self.dpp:
                self.src |= R(0)
            if base in ('v_add_co_u32', 'v_sub_co_u32', 'v_addc_co_u32', 'v_subb_co_u32', 'v_mad_u64_u32', 'v_div_scale_f32'):
                self.dst = R(0) | R(1); self.src = allsrc(2)
            if base.startswith('v_cmpx'): self.dst |= {('exec', 0)}
        elif op.startswith('ds_'):
            self.kind = 'ds'
            if 'read' in op or 'bpermute' in op or 'permute' in op or 'swizzle' in op or '_rtn' in op:
                self.dst = R(0); self.src = allsrc(1)
            else:
                self.src = allsrc(0)
        elif op.startswith('buffer_') or op.startswith('global_') or op.startswith('flat_'):
            self.kind = 'vmem'
            self.lds = bool(re.search(r'\blds\b', mods)) or '_lds_' in op
            if op in ('buffer_inv', 'buffer_wbl2'):
                pass
            elif 'load' in op and not self.lds:
                self.dst = R(0); self.src = allsrc(1)
                if 'd16' in op: self.src |= R(0)
            elif 'load' in op:
                self.src = allsrc(0) | {('m0', 0)}
            elif 'atomic' in op:
                self.src = allsrc(0)
                if 'sc0' in mods: self.dst = R(0)
            else:
                self.src = allsrc(0)
                di = 0 if op.startswith('buffer_') else 1
                if re.search(r'x[34]$', op): self.data = R(di)
        else:
            raise ValueError('unknown op ' + text)

def need(P, C):
    n = 0
    isv = lambda s: {r for r in s if r[0] in 'va'}
    iss = lambda s: {r for r in s if r[0] in ('s', 'vcc')}
    if P.kind == 'valu':
        vw = isv(P.dst); sw = iss(P.dst)
        if C.kind == 'mfma' and vw & C.src: n = max(n, 2)
        if C.kind == 'valu':
            if C.dpp and vw & C.src: n = max(n, 2)
            if C.base.startswith('v_permlane') and vw & C.src: n = max(n, 2)
            if C.base in ('v_readlane_b32', 'v_readfirstlane_b32') and vw & C.src: n = max(n, 1)
            if sw & C.src:
                n = max(n, 4 if C.base in ('v_readlane_b32', 'v_writelane_b32', 'v_div_fmas_f32') else 2)
            if ('vcc', 0) in sw and C.base == 'v_div_fmas_f32': n = max(n, 4)
        if P.base in TRANS and vw & C.src and not (C.kind == 'valu' and C.base in TRANS): n = max(n, 1)
        if P.base.startswith('v_dot'):
            if C.kind in ('valu', 'mfma', 'ds', 'vmem'):
                if C.kind == 'valu' and C.base == P.base:
                    srcab = set(regs_of(C.ops[1])) | set(regs_of(C.ops[2]))
                    if vw & srcab: n = max(n, 3)
                elif vw & (C.src | C.dst): n = max(n, 3)
        if C.kind == 'vmem' and sw & C.src: n = max(n, 5)
        if C.kind in ('salu', 'smem', 'branch') and sw & C.src: n = max(n, 1)
        if ('exec', 0) in P.dst:
            if C.kind == 'mfma': n = max(n, 4)
            if C.kind == 'valu': n = max(n, 5 if C.dpp else 4)
        if 'sdwa' in P.op and 'dst_sel:DWORD' not in P.mods and vw & (C.src | C.dst): n = max(n, 1)
    if P.kind == 'mfma':
        p = P.passes
        t = {4: (6, 8, 3), 8: (10, 12, 7), 16: (18, 20, 15)}[p]
        if C.kind == 'mfma':
            if P.dst & C.srcA: n = max(n, t[1])
            if P.dst & C.srcC and not (P.dst == C.srcC and C.passes == p): n = max(n, t[0])
            if P.dst & C.dst and not (P.dst == C.srcC and C.passes == p): n = max(n, t[0])
        elif C.kind in ('valu', 'ds', 'vmem'):
            if P.dst & (C.src | C.dst): n = max(n, t[1])
            if P.srcC & C.dst: n = max(n, t[2])
    if P.kind == 'salu' and ('m0', 0) in P.dst and C.kind == 'vmem' and ('m0', 0) in C.src: n = max(n, 1)
    if P.kind == 'vmem' and P.data and P.data & C.dst:
        n = max(n, 2 if C.kind == 'valu' else 1)
    return n

class Prog:
    def __init__(self):
        self.lines = []
    def __call__(self, text):
        for l in text.split('\n'):
            if l.strip(): self.lines.append(l.rstrip())
    def fix(self, verbose=False):
        ins = [Ins(l) for l in self.lines]
        labels = {x.label: i for i, x in enumerate(ins) if x.label}
        preds = [[] for _ in ins]
        for i, x in enumerate(ins):
            if i + 1 < len(ins) and not (x.kind == 'end' or x.op == 's_branch'): preds[i + 1].append(i)
            if x.kind == 'branch' and x.target in labels: preds[labels[x.target]].append(i)
        pad = [0] * len(ins); added = 0
        for i, C in enumerate(ins):
            if C.kind in ('dir', 'label', 'nop', 'end'): continue
            worst = 0
            stack = [(p, 0) for p in preds[i]]; seen = {}
            while stack:
                j, dist = stack.pop()
                if dist >= 20 or seen.get(j, 99) <= dist: continue
                seen[j] = dist
                P = ins[j]
                if P.kind not in ('dir', 'label', 'nop', 'end'):
                    k = need(P, C) - dist
                    if k > worst: worst = k; why = P.text
                for p in preds[j]: stack.append((p, dist + P.ws + pad[j]))
            if worst > 0:
                if verbose: print(f'pad {worst}: [{why.strip()}] -> [{C.text.strip()}]')
                pad[i] = worst; added += 1
        out = []
        for i, x in enumerate(ins):
            w = pad[i]
            while w > 0:
                k = min(w, 16); out.append(f'  s_nop {k-1}'); w -= k
            out.append(x.text)
        self.lines = out
        return added
    def text(self): return '\n'.join(self.lines) + '\n'
```

```python
import struct, math, os, re
from asmlib import Prog

L, D, F, NM = 2048, 448, 1792, 256
NAUX, NMAIN = 32, 224
WS_LN1 = 0
WS_MOD = 0x4000
WS_F1B = 0xA000
WS_FA = 0xD800
WS_FH = 0xE000
WS_LN2 = 0x12000
TS32 = 28672 + 256
WS_X1C = 0x20000
WS_X1 = 0x1F0000
WS_H = 0x3C0000
WS_WD = 0xAC0000
PS = 16384 + 128
WS_XT = 0xC50000
WS_DBG = 0xFE0000
WS_END = 0x1400000
WS_PROF = 0x1000000
KA = dict(x=0, A_re=8, A_im=16, B_re=24, B_im=32, C_re=40, C_im=48, log_dt=56, Dskip=64, B_x=72,
          w_gate=80, w_up=88, w_down=96, c=104, w_mod=112, out=120, dbg=128, ws=136)

def f2u(x): return struct.unpack('<I', struct.pack('<f', x))[0]
def u2f(u): return struct.unpack('<f', struct.pack('<I', u))[0]
def fh(x): return f'0x{f2u(x):08x}'
LOG2E = 1.4426950408889634
INV2PI = 1.0 / (2 * math.pi)
INV2PI_HI = u2f(f2u(INV2PI)); INV2PI_LO = INV2PI - INV2PI_HI

def v(a, n=1): return f'v{a}' if n == 1 else f'v[{a}:{a+n-1}]'
def a_(a, n=1): return f'a{a}' if n == 1 else f'a[{a}:{a+n-1}]'
def s(a, n=1): return f's{a}' if n == 1 else f's[{a}:{a+n-1}]'

def srd(A, d, base, nbytes):
    A(f"""  s_mov_b32 s{d}, s{base}
  s_and_b32 s{d+1}, s{base+1}, 0xffff
  s_mov_b32 s{d+2}, {nbytes:#x}
  s_mov_b32 s{d+3}, 0x20000""")

def cmul(A, P, X, W):
    A(f"  v_pk_mul_f32 {v(P,2)}, {v(X,2)}, {v(W,2)} op_sel:[0,0] op_sel_hi:[1,0]")
    A(f"  v_pk_fma_f32 {v(P,2)}, {v(X,2)}, {v(W,2)}, {v(P,2)} op_sel:[1,1,0] op_sel_hi:[0,1,1] neg_lo:[1,0,0]")

def unpack2(A, dlo, dhi, src):
    A(f"  v_lshlrev_b32 v{dlo}, 16, v{src}")
    A(f"  v_and_b32 v{dhi}, 0xffff0000, v{src}")

def descriptor(name, vgpr, sgpr, accum):
    return f""".amdhsa_kernel {name}
  .amdhsa_next_free_vgpr {vgpr}
  .amdhsa_next_free_sgpr {sgpr}
  .amdhsa_accum_offset {accum}
  .amdhsa_group_segment_fixed_size 0
  .amdhsa_kernarg_size 144
  .amdhsa_user_sgpr_count 2
  .amdhsa_user_sgpr_kernarg_segment_ptr 1
  .amdhsa_system_sgpr_workgroup_id_x 1
  .amdhsa_float_denorm_mode_32 3
.end_amdhsa_kernel
"""

class L_(list):
    def __call__(self, t): self.extend([x for x in t.split('\n') if x.strip()])

PROF = int(os.environ.get('PROF', '0'))
BUD = 31
NON = 30

class Em:
    def __init__(self, A, name):
        self.A = A; self.vm = []; self.lg = []; self.vm_done = 0; self.lg_done = 0
        self.slow = []; self.name = name; self.nst = 0; self.nspin = 0
    def __call__(self, item):
        if item is None: return
        if isinstance(item, (list, tuple)):
            for x in item: self(x)
            return
        if callable(item): item(); return
        for l in item.split('\n'):
            t = l.strip()
            if not t or t.startswith(';'): continue
            op = t.split()[0]
            m = re.search(r';@(\S+)', l); tag = m.group(1) if m else None
            if op.startswith('ds_'):
                self.lg.append(tag)
            elif op.startswith('buffer_') or op.startswith('global_'):
                self.vm.append(tag)
                assert len(self.vm) - self.vm_done <= 63 or True
            elif op == 's_waitcnt':
                m = re.search(r'vmcnt\((\d+)\)', t)
                if m: self.vm_done = max(self.vm_done, len(self.vm) - int(m.group(1)))
                m = re.search(r'lgkmcnt\((\d+)\)', t)
                if m: self.lg_done = max(self.lg_done, len(self.lg) - int(m.group(1)))
            self.A(l)
    def _cnt(self, lst, done, tags, cap):
        if isinstance(tags, str): tags = [tags]
        idx = -1
        for t in tags:
            c = [i for i, x in enumerate(lst) if x == t]
            assert c, f'tag {t} not issued'
            idx = max(idx, c[-1])
        if idx < done: return None
        return min(len(lst) - 1 - idx, cap)
    def wait(self, vm=None, lg=None):
        p = []
        if vm is not None:
            n = self._cnt(self.vm, self.vm_done, vm, 63)
            if n is not None: p.append(f'vmcnt({n})')
        if lg is not None:
            n = self._cnt(self.lg, self.lg_done, lg, 15)
            if n is not None: p.append(f'lgkmcnt({n})')
        if p: self('  s_waitcnt ' + ' '.join(p))
    def W(self, vm=None, lg=None): return lambda: self.wait(vm, lg)
    def issued(self, tag): return tag in self.vm or tag in self.lg
    def lg_out(self): return len(self.lg) - self.lg_done
    def spin(self, check, reload, sleep=2):
        n = self.nspin; self.nspin += 1
        S, R = f'{self.name}_SLOW{n}', f'{self.name}_RET{n}'
        self(check)
        self(f"  s_cbranch_vccnz {S}\n{R}:")
        o = L_()
        o(f"""{S}:
  s_cmp_eq_u32 s{BUD}, 0
  s_cbranch_scc1 {R}
  s_sub_u32 s{BUD}, s{BUD}, 1
  s_sleep {sleep}""")
        for x in reload: o(x)
        for x in check: o(x)
        o(f"  s_cbranch_vccnz {S}\n  s_branch {R}")
        self.slow += o
    def flush_slow(self):
        for x in self.slow: self.A(re.sub(r';@\S+', '', x))
        self.slow = []
    def stamp(self):
        if not PROF: return
        i = self.nst; self.nst += 1
        assert i < 15
        if i == 0: self.A("  s_memrealtime s[68:69]")
        self.A(f"  s_memtime s[{72+2*i}:{73+2*i}]")
    def stamp_flush(self, wave_sgpr=4, vt=(2, 3)):
        if not PROF: return
        A = self.A
        A(f"""  s_memrealtime s[70:71]
  s_waitcnt lgkmcnt(0) vmcnt(0)
  s_mov_b64 exec, -1
  s_lshl_b32 s25, s2, 2
  s_add_u32 s25, s25, s{wave_sgpr}
  s_lshl_b32 s25, s25, 7
  s_add_u32 s25, s25, {WS_PROF}
  v_mov_b32 v{vt[0]}, 0""")
        vals = ['s68', 's70', f's{BUD}', str(self.nst)] + [f's{72+2*i}' for i in range(self.nst)]
        if PROF == 2:
            main = self.name == 'M'
            sel = list(range(1, self.nst))[-11:] if main else list(range(1, 5))
            A(f"  s_lshl_b32 s26, s2, 2\n  s_add_u32 s26, s26, s{wave_sgpr}\n  s_cmp_lg_u32 s26, {400 if main else 20}\n  s_cbranch_scc1 {self.name}_NODBG")
            srd(A, 20, 64, 256)
            for j, i in enumerate(sel):
                A(f"  s_sub_u32 s26, s{72+2*i}, s72\n  v_mov_b32 v{vt[1]}, s26\n  buffer_store_dword v{vt[1]}, off, s[20:23], 0 offset:{4*(j + (1 if main else 12))}")
            A(f"{self.name}_NODBG:")
        for j, sv in enumerate(vals):
            A(f"  v_mov_b32 v{vt[1]}, {sv}\n  buffer_store_dword v{vt[1]}, v{vt[0]}, s[16:19], s25 offen offset:{4*j}")

def weave(E, prim, bg, every, start=0):
    bg = list(bg); acc = 0.0
    for i, x in enumerate(prim):
        E(x)
        if i >= start:
            acc += 1.0
            while acc >= every and bg:
                E(bg.pop(0)); acc -= every
    for x in bg: E(x)

def tagcheck(tags, tmp):
    o = []; tags = list(tags)
    if len(tags) % 2: tags.append(tags[-1])
    r = []
    for i in range(0, len(tags), 2):
        o.append(f"  v_bitop3_b32 v{tmp+len(r)}, v{tags[i]}, s{NON}, v{tags[i+1]} bitop3:0x7e"); r.append(tmp + len(r))
    while len(r) > 1:
        n = []
        while r:
            g = r[:3]; r = r[3:]
            if len(g) == 3: o.append(f"  v_or3_b32 v{g[0]}, v{g[0]}, v{g[1]}, v{g[2]}")
            elif len(g) == 2: o.append(f"  v_or_b32 v{g[0]}, v{g[0]}, v{g[1]}")
            n.append(g[0])
        r = n
    o.append(f"  v_cmp_ne_u32 vcc, 0, v{r[0]}")
    return o
```

```python
from common import *
from m_front import *

WF = lambda ks: 4 * ks
AK = lambda a, b: 112 + 16 * a + 4 * b
BH = lambda c, b: 128 + 16 * c + 4 * b
CA_ = lambda c: 96 + 4 * c

def wread(ks):
    o = wblock(ks) - W1
    r = vWT
    pre = []
    if o >= 65536 - 1024:
        r = 21; o -= 57344
    return [f"  ds_read_b64_tr_b16 {a_(WF(ks),2)}, v{r} offset:{o}",
            f"  ds_read_b64_tr_b16 {a_(WF(ks)+2,2)}, v{r} offset:{o+512} ;@wf{ks}"]

class Q:
    def __init__(self): self.q = []
    def add(self, nb, items):
        for x in items: self.q.append((nb, x))
    def pop(self, n):
        if self.q and self.q[0][0] <= n: return self.q.pop(0)[1]
        return None

def conv(E, hp, wdma, NB1, hooks):
    E(f"""  s_lshl_b32 s46, s{sCH}, 3
  s_add_u32 s46, s46, s39
  s_add_u32 s47, s46, {4*448*8}
  s_add_u32 s46, s46, {2*448*8}
  v_min_u32 v22, 223, v0
  v_lshlrev_b32 v22, 6, v22
  s_mov_b32 s42, {WS_F1B}""")
    gl = [f"  buffer_load_dwordx2 {v(vGA,2)}, off, s[16:19], s46 sc1 ;@ga",
          f"  buffer_load_dwordx2 {v(vC1B,2)}, off, s[16:19], s47 sc1 ;@ga"]
    bg = [gl[0], gl[1]]
    for ks in range(NB1, 23): bg.append(wdma(ks))
    wr = []
    for ks in range(NB1): wr += wread(ks)
    mix = []
    while bg or wr:
        if wr: mix += wr[:3]; del wr[:3]
        if bg: mix.append(bg.pop(0))
    if os.environ.get('XM'):
        E(hp); E.stamp(); E(mix)
    else: weave(E, hp, mix, 4.0, start=2)
    E(f"""  s_lshl_b32 s25, s7, 7
  s_lshl_b32 s26, s{sCH}, 6
  s_add_u32 s43, s25, s26
  s_mul_i32 s25, s{sPAR}, {8*TS32}
  s_add_u32 s43, s43, s25
  s_add_u32 s43, s43, {WS_X1C}
  s_waitcnt lgkmcnt(0)""")
    E.stamp()
    E("  s_barrier")
    E.stamp()
    reads = []
    for c in range(8):
        for b in range(4):
            reads.append(f"  ds_read_b128 {v(BH(c,b),4)}, v{vB} offset:{512*c + 384 - 128*b} ;@B{c}_{b}")
            o = 64 * (62 - 8 * c - 2 * b)
            reads.append(f"  ds_read_b64 {a_(AK(c,b),2)}, v{vA} offset:{o}")
            reads.append(f"  ds_read_b64 {a_(AK(c,b)+2,2)}, v{vA} offset:{o+8} ;@A{c}_{b}")
    mf = []
    for c in range(8):
        order = list(range(1, c)) + [0] + ([c] if c else [])
        for a in order:
            for b in range(4): mf.append((c, a, b))
    endc = {c: max(i for i, m in enumerate(mf) if m[0] == c) for c in range(8)}
    T = 64
    HD, XV, Y0, Y1, PK = T, T + 4, T + 8, T + 12, T + 16
    def pre(s_):
        o = L_()
        o(f"  ds_read_b64 {v(PK,2)}, v{vEP} offset:{O_HH + 512 + 1024*s_}")
        o(f"  ds_read_b64 {v(PK+2,2)}, v{vEP} offset:{O_XX + 1024*s_} ;@eh{s_}")
        o.append(None); o.append(None); o.append(None); o.append(None)
        o.append(E.W(lg=f'eh{s_}'))
        for j in range(2): unpack2(o, HD + 2 * j, HD + 2 * j + 1, PK + j)
        for j in range(4): o(f"  v_mul_f32 v{HD+j}, s48, v{HD+j}")
        for j in range(2): o(f"  v_cvt_pk_bf16_f32 v{PK+j}, v{HD+2*j}, v{HD+2*j+1}")
        for j in range(2): unpack2(o, XV + 2 * j, XV + 2 * j + 1, PK + 2 + j)
        for j in range(2): unpack2(o, HD + 2 * j, HD + 2 * j + 1, PK + j)
        return o
    def send(s_):
        b = (s_ & 1) * 2048
        return [f"  ds_write_b128 v{vEXW}, {v(CA_(2*s_),4)} offset:{b}",
                f"  ds_write_b128 v{vEXW}, {v(CA_(2*s_+1),4)} offset:{b+1024} ;@ex{s_}"]
    def post(s_):
        b = (s_ & 1) * 2048
        o = L_()
        O1, O2 = PK + 4 + 4 * (s_ & 1), PK + 6 + 4 * (s_ & 1)
        o(f"  ds_read_b128 {v(Y0,4)}, v{vEXR} offset:{b}")
        o(f"  ds_read_b128 {v(Y1,4)}, v{vEXR} offset:{b + O_P1} ;@er{s_}")
        o(f"  s_add_u32 s44, s43, {16*TS32*s_}\n  s_add_u32 s45, s43, {16*TS32*s_ + WS_X1 - WS_X1C}")
        o.append(None); o.append(None)
        o.append(E.W(lg=f'er{s_}'))
        def rnd(dst=PK):
            for j in range(2): o(f"  v_cvt_pk_bf16_f32 v{dst+j}, v{Y0+2*j}, v{Y0+2*j+1}")
            for j in range(2): unpack2(o, Y0 + 2 * j, Y0 + 2 * j + 1, dst + j)
        for j in range(4): o(f"  v_add_f32 v{Y0+j}, v{Y0+j}, v{Y1+j}")
        rnd()
        for j in range(4): o(f"  v_add_f32 v{Y0+j}, v{Y0+j}, v{HD+j}")
        rnd()
        for j in range(4): o(f"  v_mul_f32 v{Y0+j}, v{Y0+j}, v{vGA}")
        rnd()
        for j in range(4): o(f"  v_add_f32 v{Y0+j}, v{Y0+j}, v{XV+j}")
        rnd(O1)
        for j in range(4): o(f"  v_mul_f32 v{Y0+j}, v{Y0+j}, v{vC1B}")
        for j in range(2): o(f"  v_cvt_pk_bf16_f32 v{O2+j}, v{Y0+2*j}, v{Y0+2*j+1}")
        o(f"  buffer_store_dwordx2 {v(O2,2)}, v{vST}, s[16:19], s44 offen sc1")
        o(f"  buffer_store_dwordx2 {v(O1,2)}, v{vST}, s[16:19], s45 offen sc1")
        return o
    def gacheck():
        E.wait(vm='ga')
        E.spin(tagcheck([vGA + 1, vC1B + 1], Y0), gl + ["  s_waitcnt vmcnt(0)"], sleep=1)
        E(f"""  v_add_f32 v{vC1B}, 1.0, v{vC1B}
  v_cvt_pk_bf16_f32 v{vC1B}, v{vC1B}, v{vC1B}
  v_and_b32 v{vC1B}, 0xffff0000, v{vC1B}""")
    f1l = "  buffer_load_dword v23, v22, s[16:19], s42 offen sc1 ;@f1b"
    def f1check():
        E.wait(vm='f1b')
        E.spin([f"  v_cmp_ne_u32 vcc, s{NON}, v23"], [f1l, "  s_waitcnt vmcnt(0)"], sleep=1)
    def bar(s_, vm=None):
        def f():
            E.wait(vm=vm, lg=f'ex{s_}')
            E("  s_barrier")
        return f
    ep = Q(); lo = Q()
    ep.add(4, pre(0) + [gacheck])
    for s_ in range(3):
        e = endc[2 * s_ + 1]
        ep.add(e + 3, send(s_))
        vm = None
        if s_ == 1: vm = 'w22'
        if s_ == 2: vm = 'w27'
        extra = [f1check] if s_ == 1 else []
        ep.add(e + 5, extra + [bar(s_, vm)] + post(s_) + pre(s_ + 1))
    lo.add(0, [wdma(ks) for ks in range(23, 28)])
    lo.add(20, [f1l])
    st = dict(bar1=False, bar2=False)
    ep.add(0, [])
    wq = Q()
    ri = 0
    PER = float(os.environ.get('C_PER', 3.0))
    credit = 0.0
    for _ in range(12): E(reads[ri]); ri += 1
    started = set()
    for i, (c, a, b) in enumerate(mf):
        need = [f'A{a}_{b}', f'B{c-a}_{b}']
        while not all(E.issued(t) for t in need): E(reads[ri]); ri += 1
        E.wait(lg=need)
        cc = v(CA_(c), 4) if c in started else '0'
        started.add(c)
        E(f"  v_mfma_f32_16x16x32_bf16 {v(CA_(c),4)}, {a_(AK(a,b),4)}, {v(BH(c-a,b),4)}, {cc}")
        if E.issued('er1') and not st['bar1']:
            st['bar1'] = True
            for ks in range(NB1, 23): wq.add(i, wread(ks))
            if 'after1' in hooks: lo.add(max(i, hooks['after1'][0]), hooks['after1'][1])
        if E.issued('er2') and not st['bar2']:
            st['bar2'] = True
            for ks in range(23, 28): wq.add(i, wread(ks))
            if 'after2' in hooks: lo.add(max(i, hooks['after2'][0]), hooks['after2'][1])
        credit += PER
        if i % 3 == 2 and lo.q and lo.q[0][0] <= i:
            E(lo.pop(i)); credit -= 3.0
        while credit >= 1.0:
            x = None
            ahead = ri // 12 - c
            if ri < len(reads) and E.lg_out() < 13 and (ahead < 2 or not (ep.q and ep.q[0][0] <= i)):
                x = reads[ri]; ri += 1
            elif ep.q and ep.q[0][0] <= i:
                x = ep.pop(i)
            elif wq.q and E.lg_out() < 13: x = wq.pop(i)
            E(x)
            credit -= 1.0
    for q in (ep, wq, lo):
        while q.q: E(q.pop(10**9))
    E.stamp()
    return send(3), bar(3), post(3)
```

```python
from common import *
CB = 33792
O_KC, O_HH, O_XX, O_P1 = 4096, 20736, 25344, 29696
KCS = 4160
RP = 528; WB = 32 * RP
W1 = 4 * WB
W2 = W1 + 14 * 4096
O_AUG = W2 + 9 * 4096
O_STG = O_AUG + 1920
LDS = 163840
def wblock(ks): return W1 + 4096 * ks if ks < 23 else W1 + 4096 * (ks - 23)
SLOT = [W1 + 20480, W2, 0, 28672, 57344]
DPP16 = ['quad_perm:[1,0,3,2]', 'quad_perm:[2,3,0,1]', 'row_half_mirror', 'row_mirror']
EX56 = "  s_mov_b32 exec_hi, 0x00ffffff"
EXALL = "  s_mov_b64 exec, -1"

def prod_loads(E, X):
    E(f"""  buffer_load_dwordx4 {v(X,4)}, v4, s[8:11], s24 offen ;@ln1
  buffer_load_dwordx3 {v(X+4,3)}, v4, s[8:11], s24 offen offset:16 ;@ln1
{EX56}
  buffer_load_dwordx4 {v(X+8,4)}, v5, s[8:11], s26 offen ;@xs
  buffer_load_dwordx4 {v(X+12,4)}, v5, s[8:11], s26 offen offset:896 ;@xs
{EXALL}""")

def non_load(r): return f"  buffer_load_dword v{r}, off, s[20:23], 0 sc1 ;@non"

def ln_finish(o, S, Q):
    o(f"""  v_mul_f32 v{S}, {fh(1.0/448)}, v{S}
  v_mul_f32 v{Q}, {fh(1.0/448)}, v{Q}
  v_fma_f32 v{Q}, -v{S}, v{S}, v{Q}
  v_max_f32 v{Q}, 0, v{Q}
  v_cvt_pk_bf16_f32 v{Q}, v{Q}, v{Q}
  v_and_b32 v{Q}, 0xffff0000, v{Q}
  v_add_f32 v{Q}, {fh(1e-5)}, v{Q}
  v_cvt_pk_bf16_f32 v{Q}, v{Q}, v{Q}
  v_and_b32 v{Q}, 0xffff0000, v{Q}
  v_sqrt_f32 v{Q}, v{Q}
  v_cvt_pk_bf16_f32 v{Q}, v{Q}, v{S}""")

def ln1_compute(E, X, T):
    E.wait(vm='ln1')
    for j in range(7): unpack2(E, T + 2 * j, T + 2 * j + 1, X + j)
    S, Q, Q2 = T + 14, T + 16, T + 18
    E(f"  v_pk_add_f32 {v(S,2)}, {v(T,2)}, {v(T+2,2)}")
    E(f"  v_pk_mul_f32 {v(Q,2)}, {v(T,2)}, {v(T,2)}")
    E(f"  v_pk_mul_f32 {v(Q2,2)}, {v(T+2,2)}, {v(T+2,2)}")
    for j in range(2, 7):
        q = Q if j % 2 == 0 else Q2
        E(f"  v_pk_add_f32 {v(S,2)}, {v(S,2)}, {v(T+2*j,2)}")
        E(f"  v_pk_fma_f32 {v(q,2)}, {v(T+2*j,2)}, {v(T+2*j,2)}, {v(q,2)}")
    E(f"""  v_pk_add_f32 {v(Q,2)}, {v(Q,2)}, {v(Q2,2)}
  v_add_f32 v{S}, v{S}, v{S+1}
  v_add_f32 v{Q}, v{Q}, v{Q+1}
  s_lshl_b32 s25, s4, 3""")
    fl = [f"  s_add_u32 s25, s25, {O_STG}", f"  v_lshl_add_u32 v{T}, v3, 2, s25", "  s_nop 0", "  s_nop 0"]
    for m, f in zip(DPP16, fl):
        E(f"  v_add_f32_dpp v{S}, v{S}, v{S} {m} row_mask:0xf bank_mask:0xf")
        E(f"  v_add_f32_dpp v{Q}, v{Q}, v{Q} {m} row_mask:0xf bank_mask:0xf")
        E(f)
    E(f"""  v_add_f32_dpp v{S}, v{S}, v{S} row_bcast:15 row_mask:0xa bank_mask:0xf
  v_add_f32_dpp v{Q}, v{Q}, v{Q} row_bcast:15 row_mask:0xa bank_mask:0xf""")
    ln_finish(E, S, Q)
    E(f"""  s_mov_b32 exec_lo, 0x10000
  s_mov_b32 exec_hi, 0x10000
  ds_write_b32 v{T}, v{Q} ;@stg
{EXALL}""")

def publish(E, X, T, NR, lbl):
    E.wait(vm=['non', 'xs'])
    E.spin([f"  v_cmp_eq_u32 vcc, 0, v{NR}"], [non_load(NR), "  s_waitcnt vmcnt(0)"], sleep=1)
    E(f"""  v_readfirstlane_b32 s{NON}, v{NR}
  v_lshrrev_b32 v{X}, 2, v2
  v_mul_u32_u24 v{X}, {4*PS}, v{X}
  v_and_b32 v{X+1}, 3, v2
  v_lshl_add_u32 v{X}, v{X+1}, 4, v{X}
  s_mul_i32 s25, s4, {56*PS}
  s_lshl_b32 s26, s2, 6
  s_add_u32 s25, s25, s26
  s_add_u32 s25, s25, {WS_XT}""")
    for u in range(4):
        E(f"""  v_mov_b32 v{T+4*u}, v{X+8+u}
  v_mov_b32 v{T+4*u+1}, v{NR}
  v_mov_b32 v{T+4*u+2}, v{X+12+u}
  v_mov_b32 v{T+4*u+3}, v{NR}""")
    E(EX56)
    for u in range(4):
        E(f"  buffer_store_dwordx4 {v(T+4*u,4)}, v{X}, s[16:19], s25 offen sc1")
        if u < 3: E(f"  s_add_u32 s25, s25, {PS}")
    E(EXALL)
    E.wait(lg='stg')
    E(f"""  s_barrier
  s_cmp_lg_u32 s4, 3
  s_cbranch_scc1 {lbl}""")
    A = E.A
    A(f"""  v_lshlrev_b32 v{X+8}, 3, v{X+1}
  v_add_u32 v{X+8}, {O_STG}, v{X+8}
  ds_read_b64 {v(X+10,2)}, v{X+8}
  v_mov_b32 v{X+13}, v{NR}
  v_mov_b32 v{X+15}, v{NR}
  s_mov_b64 exec, 15
  s_waitcnt lgkmcnt(0)
  v_mov_b32 v{X+12}, v{X+10}
  v_mov_b32 v{X+14}, v{X+11}
  buffer_store_dwordx4 {v(X+12,4)}, v6, s[16:19], s26 offen offset:{WS_LN1} sc1
{EXALL}
{lbl}:""")

def entry(A):
    A(f"""  s_cmp_ge_u32 s2, {NAUX+NMAIN}
  s_cbranch_scc1 END""")
    if PROF: A("  s_memrealtime s[68:69]\n  s_memtime s[72:73]")
    A(f"""  s_load_dwordx4 s[64:67], s[0:1], 128
  s_load_dwordx16 s[32:47], s[0:1], 0
  s_load_dwordx16 s[48:63], s[0:1], 64
  s_memrealtime s[28:29]
  v_lshrrev_b32 v1, 6, v0
  v_and_b32 v2, 63, v0               ; lane
  v_readfirstlane_b32 s4, v1         ; wave
  v_lshrrev_b32 v3, 5, v2            ; lane/32
  v_and_b32 v4, 31, v2
  v_mul_u32_u24 v4, 28, v4
  v_mul_u32_u24 v5, 896, v3
  v_add_u32 v4, v4, v5
  v_and_b32 v5, 3, v2
  v_mul_u32_u24 v5, 1792, v5
  v_lshrrev_b32 v6, 2, v2
  v_lshl_add_u32 v5, v6, 4, v5
  v_lshlrev_b32 v6, 4, v2            ; lane*16
  s_lshl_b32 s24, s2, 2
  s_add_u32 s24, s24, s4
  s_mul_i32 s24, s24, 1792
  s_mul_i32 s26, s2, 7168
  s_mul_i32 s25, s4, 224
  s_add_u32 s26, s26, s25
  s_mov_b32 s{BUD}, 20000
  s_sub_u32 s3, s2, {NAUX}
  s_and_b32 s12, s3, 7
  s_lshr_b32 s6, s3, 3               ; j
  s_mul_i32 s13, s6, 37
  s_lshr_b32 s13, s13, 8             ; j/7
  s_mul_i32 s5, s13, 7
  s_sub_u32 s14, s6, s5              ; j%7
  s_and_b32 s5, s12, 1
  s_lshl_b32 s5, s5, 2
  s_add_u32 s5, s5, s13              ; tq
  s_lshr_b32 s6, s12, 1
  s_mul_i32 s6, s6, 7
  s_add_u32 s6, s6, s14              ; fq
  s_mov_b32 s7, s3
  s_lshl_b32 s25, s7, 2
  s_add_u32 s25, s25, s4
  s_lshl_b32 s25, s25, 8             ; d*512 + par*256
  v_lshlrev_b32 v7, 2, v2
  v_add_u32 v7, s25, v7
  s_lshl_b32 s27, s7, 2
  s_waitcnt lgkmcnt(0)""")
    srd(A, 20, 64, 256)
    A(f"""  s_cmp_lg_u32 s24, 0
  s_cbranch_scc1 NOTAG
  s_lshl_b32 s28, s28, 1
  s_or_b32 s28, s28, 1
  v_mov_b32 v8, s28
  s_mov_b64 exec, 1
  buffer_store_dword v8, off, s[20:23], 0 sc1
  s_mov_b64 exec, -1
NOTAG:""")
    srd(A, 8, 32, L * 896)
    srd(A, 16, 66, WS_END)
    A(f"""  s_cmp_lt_u32 s2, {NAUX}
  s_cbranch_scc1 AUX""")

vA, vB, vEP, vEXW, vEXR, vST, vWD, vWT, vHW, vSN = 8, 9, 10, 11, 12, 13, 14, 15, 16, 17
vGA, vC1B = 18, 28
SENT = 24
G = 32
sPAR, sCH, sCB = 27, 28, 29

def front(E):
    RAW = 52; LX = 208; NR = 62
    prod_loads(E, LX)
    for j in range(6): E(f"  global_load_dword v{RAW+j}, v7, s[{34+2*j}:{35+2*j}] ;@par")
    E(f"""  s_load_dword s46, s[46:47], s27
  s_load_dword s48, s[48:49], s27
  s_and_b32 s{sPAR}, s4, 1
  s_lshr_b32 s{sCH}, s4, 1
  s_mul_i32 s{sCB}, s{sCH}, {CB}
  s_cmp_eq_u32 s{sCH}, 0
  s_cselect_b32 s52, s52, s54
  s_cselect_b32 s53, s53, s55""")
    srd(E, 12, 52, 448 * 3584)
    T = 96
    E(f"""  v_and_b32 v1, 127, v0              ; t
  v_lshlrev_b32 v60, 4, v1
  v_sub_u32 v60, 2047, v60
  v_cvt_f32_u32 v61, v60""")
    for e in range(20): E(f"  v_add_f32 v{T+e}, {fh(-float(e))}, v61" if e else f"  v_mov_b32 v{T}, v61")
    for j in range(10): E(f"  v_cvt_pk_bf16_f32 v{T+20+j}, v{T+2*j}, v{T+1+2*j}")
    for e in range(19):
        if e % 2 == 0: E(f"  v_and_b32 v{T+e}, 0x7fff, v{T+20+e//2}")
        else: E(f"  v_bfe_u32 v{T+e}, v{T+20+e//2}, 16, 15")
    for e in range(19):
        E(f"""  v_subrev_u32 v{T+e}, {0x4300-128}, v{T+e}
  v_subrev_u32 v{G+e}, {e}, v60
  v_min_i32 v{G+e}, 127, v{G+e}
  v_max3_i32 v{G+e}, v{G+e}, v{T+e}, 0
  v_lshrrev_b32 v{T+e}, 4, v{G+e}
  v_add_u32 v{G+e}, v{G+e}, v{T+e}
  v_lshl_add_u32 v{G+e}, v{G+e}, 2, s{sCB}""")
    KW, KR, P0, P1, P2, P3 = 240, 241, 242, 243, 244, 245
    E(f"""  s_mul_i32 s25, s4, {WB}
  v_lshl_add_u32 v{KW}, v2, 3, s25
  v_and_b32 v60, 31, v2              ; m / b
  v_mul_u32_u24 v{KR}, {RP}, v60
  v_add_u32 v{KR}, s25, v{KR}
  v_lshl_add_u32 v{KR}, v3, 4, v{KR}
  s_mul_i32 s25, s{sPAR}, {O_P1}
  s_add_u32 s25, s25, s{sCB}
  v_lshlrev_b32 v{P0}, 3, v60
  v_lshl_add_u32 v{P0}, v3, 2, v{P0}     ; slot 8b+4g
  v_cmp_eq_u32 vcc, 0, v3
  v_lshlrev_b32 v61, 2, v60
  v_lshlrev_b32 v63, 1, v60
  v_add_u32 v61, 256, v61
  v_add_u32 v63, 384, v63
  v_cndmask_b32 v{P1}, v63, v61, vcc
  v_cndmask_b32 v61, 64, 2, vcc
  v_add_u32 v{P2}, v{P1}, v61
  v_lshl_add_u32 v{P3}, v3, 7, v60
  v_add_u32 v{P3}, 512, v{P3}""")
    for p in (P0, P1, P2, P3):
        E(f"  v_lshrrev_b32 v61, 4, v{p}\n  v_add_u32 v{p}, v{p}, v61\n  v_lshl_add_u32 v{p}, v{p}, 2, s25")
    E(f"""  v_add_u32 v{vEXW}, s25, v6
  v_lshrrev_b32 v60, 3, v2           ; row
  v_and_b32 v61, 7, v2               ; chunk
  v_mul_u32_u24 v{vSN}, {TS32}, v60
  v_lshl_add_u32 v{vSN}, v61, 4, v{vSN}
  v_and_b32 v63, 2, v60              ; 2*((row>>1)&1)
  v_xor_b32 v61, v61, v63
  s_lshl_b32 s25, s{sCH}, 2
  v_xor_b32 v61, s25, v61
  v_mul_u32_u24 v{vWD}, 3584, v60
  v_lshl_add_u32 v{vWD}, v61, 4, v{vWD}
  v_mov_b32 v{SENT}, -1
  v_mov_b32 v{SENT+1}, -1
  v_mov_b32 v{SENT+2}, -1
  v_mov_b32 v{SENT+3}, -1""")
    E(non_load(NR))
    E(f"""  ; scalar offsets : s34 xT, s35 sentinel x1, s36 H base, s37 W soffset, s38 wave*1024, s39 mod, s47 stats
  s_mul_i32 s35, s{sCH}, {WS_X1 - WS_X1C}
  s_mul_i32 s25, s{sPAR}, {32*TS32}
  s_add_u32 s35, s35, s25
  s_lshl_b32 s25, s7, 7
  s_add_u32 s35, s35, s25
  s_add_u32 s35, s35, {WS_X1C}
  s_mul_i32 s36, s5, 112
  s_lshl_b32 s25, s6, 2
  s_add_u32 s36, s36, s25
  s_add_u32 s36, s36, s4
  s_lshl_b32 s36, s36, 10
  s_add_u32 s36, s36, {WS_H}
  s_mul_i32 s37, s{sPAR}, {8*3584}
  s_lshl_b32 s25, s6, 7
  s_add_u32 s37, s37, s25
  s_lshl_b32 s38, s4, 10
  s_lshl_b32 s39, s7, 4
  s_add_u32 s39, s39, {WS_MOD}
  s_waitcnt lgkmcnt(0)
  s_lshl_b32 s47, s4, 12
  s_mul_i32 s34, s7, {PS}
  s_add_u32 s34, s34, s47
  s_add_u32 s34, s34, {WS_XT}
  s_cmp_eq_u32 s{sCH}, 0
  s_cselect_b32 s25, 16, 0
  s_lshl_b32 s46, s46, s25
  s_and_b32 s46, s46, 0xffff0000     ; log_dt
  s_lshl_b32 s48, s48, s25
  s_and_b32 s48, s48, 0xffff0000     ; Dskip
  v_mov_b32 v60, {fh(LOG2E)}
  v_mul_f32 v60, s46, v60
  v_exp_f32 v60, v60
  s_mov_b32 s40, {fh(LOG2E)}
  v_cvt_pk_bf16_f32 v60, v60, v60
  v_and_b32 v60, 0xffff0000, v60     ; dt
  s_mov_b32 s41, {fh(LOG2E)}
  s_mov_b32 s42, {fh(INV2PI_HI)}
  s_mov_b32 s43, {fh(INV2PI_HI)}
  s_mov_b32 s44, {fh(INV2PI_LO)}
  s_mov_b32 s45, {fh(INV2PI_LO)}""")
    E.stamp()
    ln1_compute(E, LX, 96)
    E.stamp()
    def wdma(ks):
        return [f"  s_add_u32 m0, s38, {wblock(ks)}",
                f"  s_add_u32 s25, s37, {16*3584*ks}",
                f"  buffer_load_dwordx4 v{vWD}, s[12:15], s25 offen lds ;@w{ks}"]
    sn = []
    for j in range(4): sn.append([f"  s_add_u32 s25, s35, {8*TS32*j}", f"  buffer_store_dwordx4 {v(SENT,4)}, v{vSN}, s[16:19], s25 offen sc1 ;@sn"])
    NB1 = 14
    w1 = [wdma(ks) for ks in range(NB1)]
    if os.environ.get('XW'): w1 = [x[:2] for x in w1]
    if os.environ.get('XS'): sn = [x[:1] for x in sn]
    bg = w1[:6] + [x for p in zip(sn, w1[6:10], w1[10:]) for x in p]
    Kp = L_()
    Kp.append(E.W(vm='par'))
    AR, AI, BR, BI, CR, CI = 148, 150, 152, 154, 156, 158
    TH, TL, CBR, CBI, MX, EE, FF = 160, 162, 164, 166, 168, 170, 172
    for j, r in enumerate((AR, AI, BR, BI, CR, CI)): unpack2(Kp, r, r + 1, RAW + j)
    bc = "op_sel:[0,0] op_sel_hi:[1,0]"
    Kp(f"""  v_pk_mul_f32 {v(AR,2)}, {v(AR,2)}, v[60:61] {bc}
  v_pk_mul_f32 {v(AI,2)}, {v(AI,2)}, v[60:61] {bc}
  v_pk_mul_f32 {v(BR,2)}, {v(BR,2)}, v[60:61] {bc}
  v_pk_mul_f32 {v(BI,2)}, {v(BI,2)}, v[60:61] {bc}
  v_pk_mul_f32 {v(AR,2)}, {v(AR,2)}, s[40:41]
  v_pk_mul_f32 {v(TH,2)}, {v(AI,2)}, s[42:43]
  v_pk_mul_f32 {v(CBR,2)}, {v(CR,2)}, {v(BR,2)}
  v_pk_mul_f32 {v(CBI,2)}, {v(CR,2)}, {v(BI,2)}
  v_pk_fma_f32 {v(TL,2)}, {v(AI,2)}, s[42:43], {v(TH,2)} neg_lo:[0,0,1] neg_hi:[0,0,1]
  v_pk_fma_f32 {v(CBR,2)}, {v(CI,2)}, {v(BI,2)}, {v(CBR,2)} neg_lo:[1,0,0] neg_hi:[1,0,0]
  v_pk_fma_f32 {v(CBI,2)}, {v(CI,2)}, {v(BR,2)}, {v(CBI,2)}
  v_pk_fma_f32 {v(TL,2)}, {v(AI,2)}, s[44:45], {v(TL,2)}
  v_max3_f32 v{MX}, |v{CBR}|, |v{CBR+1}|, |v{CBI}|
  v_max_f32 v{MX}, v{MX}, |v{CBI+1}|""")
    Wr = {1: 176, 8: 180, 256: 184, 512: 188, 1024: 192, 16: 196}
    for n_, Lw in enumerate((1, 8, 256)):
        w = Wr[Lw]
        e_, f_ = (AR, TH) if Lw == 1 else (EE, FF)
        if Lw != 1:
            Kp(f"""  s_mov_b32 s40, {fh(float(Lw))}
  s_mov_b32 s41, {fh(float(Lw))}
  v_pk_mul_f32 {v(EE,2)}, {v(AR,2)}, s[40:41]
  v_pk_mul_f32 {v(FF,2)}, {v(TH,2)}, s[40:41]""")
        Kp(f"""  v_exp_f32 v{EE}, v{e_}
  v_exp_f32 v{EE+1}, v{e_+1}
  v_max_f32_dpp v{MX}, v{MX}, v{MX} {DPP16[n_]} row_mask:0xf bank_mask:0xf
  v_fract_f32 v{FF}, v{f_}
  v_fract_f32 v{FF+1}, v{f_+1}""")
        if Lw == 1: Kp(f"  v_pk_add_f32 {v(FF,2)}, {v(FF,2)}, {v(TL,2)}")
        else: Kp(f"  v_pk_fma_f32 {v(FF,2)}, {v(TL,2)}, s[40:41], {v(FF,2)}")
        for m in range(2):
            Kp(f"  v_cos_f32 v{w+2*m}, v{FF+m}\n  v_sin_f32 v{w+2*m+1}, v{FF+m}")
        if n_ == 2: Kp(f"  v_max_f32_dpp v{MX}, v{MX}, v{MX} {DPP16[3]} row_mask:0xf bank_mask:0xf")
        for m in range(2):
            neg = " neg_hi:[1,0]" if Lw == 8 else ""
            Kp(f"  v_pk_mul_f32 {v(w+2*m,2)}, {v(w+2*m,2)}, {v(EE,2)} op_sel:[0,{m}] op_sel_hi:[1,{m}]{neg}")
    Kp(f"""  v_readlane_b32 s40, v{MX}, 0
  v_readlane_b32 s41, v{MX}, 16
  v_readlane_b32 s42, v{MX}, 32
  v_readlane_b32 s43, v{MX}, 48""")
    def cm2(P, X, W):
        for m in range(2): Kp(f"  v_pk_mul_f32 {v(P+2*m,2)}, {v(X+2*m,2)}, {v(W+2*m,2)} op_sel:[0,0] op_sel_hi:[1,0]")
        for m in range(2): Kp(f"  v_pk_fma_f32 {v(P+2*m,2)}, {v(X+2*m,2)}, {v(W+2*m,2)}, {v(P+2*m,2)} op_sel:[1,1,0] op_sel_hi:[0,1,1] neg_lo:[1,0,0]")
    cm2(Wr[512], Wr[256], Wr[256]); cm2(Wr[16], Wr[8], Wr[8])
    Kp(f"""  s_max_u32 s40, s40, s41
  s_max_u32 s42, s42, s43
  s_max_u32 s40, s40, s42
  s_lshr_b32 s40, s40, 23
  s_sub_i32 s41, 140, s40
  s_sub_i32 s42, s40, 140""")
    cm2(Wr[1024], Wr[512], Wr[512])
    npub = len(Kp)
    X = lambda a: 64 + 4 * a
    for m in range(2):
        Kp(f"  v_ldexp_f32 v{X(0)+2*m}, v{CBR+m}, s41\n  v_ldexp_f32 v{X(0)+2*m+1}, v{CBI+m}, s41")
    CV = 200; cnt = [0]
    def emit(src, row):
        t = CV + 2 * (cnt[0] % 4); cnt[0] += 1
        Kp(f"  v_cvt_pk_f16_f32 v{t}, v{src}, v{src+1}\n  v_cvt_pk_f16_f32 v{t+1}, v{src+2}, v{src+3}")
        Kp(f"  ds_write_b64 v{KW}, {v(t,2)} offset:{row*RP}")
    plan = [(1, 0, 1), (8, 0, 256), (12, 0, 512), (16, 0, 1024), (2, 1, 1), (14, 8, 512), (17, 8, 1024), (3, 2, 1),
            (18, 12, 1024), (9, 2, 256), (20, 16, 1024), (4, 3, 1), (19, 14, 1024), (5, 4, 1), (10, 4, 256), (13, 4, 512),
            (6, 5, 1), (15, 10, 512), (7, 6, 1), (11, 6, 256)]
    prev = 0
    for (a, src, w) in plan:
        cm2(X(a), X(src), Wr[w]); emit(X(prev), prev); prev = a
    emit(X(prev), prev)
    AF, BF = 128, 192
    for ks in range(16): Kp(f"  ds_read_b128 {a_(AF+4*ks,4)}, v{KR} offset:{32*ks}")
    Y = lambda j: 64 + 4 * (j % 6)
    Kp(f"""  v_mov_b32 v58, 0x3c00
  v_mov_b32 v59, 0x3c00
  ds_write_b64 v{KW}, v[58:59]""")
    emit(Wr[8], 1); emit(Wr[16], 2)
    src = {1: Wr[8], 2: Wr[16]}
    for j in range(3, 32):
        cm2(Y(j), src[j - 2], Wr[16]); src[j] = Y(j)
        if j > 3: emit(Y(j - 1), j - 1)
    emit(Y(31), 31)
    XT = lambda i: 96 + 4 * i; ST = lambda i: 112 + 4 * i; SA, CA = 128, 132
    crit = []
    for i in range(4):
        crit.append(f"  buffer_load_dwordx4 {v(XT(i),4)}, v6, s[16:19], s34 offen offset:{1024*i} sc1 ;@st")
        crit.append(f"  buffer_load_dwordx4 {v(ST(i),4)}, v6, s[16:19], s47 offen offset:{1024*i} sc1 ;@st")
    crit.append(f"  buffer_load_dwordx4 {v(SA,4)}, off, s[16:19], s39 sc1 ;@st")
    crit.append(f"  buffer_load_dwordx4 {v(CA,4)}, off, s[16:19], s39 offset:3584 sc1 ;@st")
    npub = int(os.environ.get('K_PUB', npub))
    E(Kp[:npub])
    publish(E, LX, 224, NR, 'M_NOST')
    E.stamp()
    ncr = int(os.environ.get('K_CRIT', 60))
    rest = Kp[npub:]
    weave(E, rest[:len(rest)-ncr], bg, float(os.environ.get('K_EVERY', 15)), start=0)
    E.stamp()
    weave(E, rest[len(rest)-ncr:], crit, 5)
    E.stamp()
    for ks in range(16): E(f"  ds_read_b128 {a_(BF+4*ks,4)}, v{KR} offset:{32*ks} ;@bf{ks}")
    ACC = 224
    fill = L_()
    fill(f"""  v_lshlrev_b32 v63, 5, v1           ; t*32
  v_add_u32 v63, s{sCB}, v63
  v_cmp_ne_u32 vcc, 127, v1
  s_mov_b64 s[44:45], vcc
  v_mov_b32 v52, 0
  v_mov_b32 v53, 0
  v_mov_b32 v54, 0
  v_mov_b32 v55, 0
  v_bfe_u32 v56, v1, 2, 2
  v_mul_u32_u24 v56, {KCS}, v56
  v_and_b32 v57, 3, v1
  v_lshl_add_u32 v56, v57, 4, v56
  v_add_u32 v56, {O_KC+4096}, v56
  v_and_b32 v57, 31, v1
  v_lshlrev_b32 v57, 4, v57
  v_add_u32 v57, {O_HH}, v57
  v_cmp_gt_u32 vcc, 32, v2
  v_cndmask_b32 v56, v57, v56, vcc
  v_add_u32 v56, s{sCB}, v56
  v_lshl_add_u32 v{vHW}, v2, 2, s38
  v_and_b32 v60, 15, v2              ; i / n
  v_lshrrev_b32 v61, 4, v2           ; g4
  v_and_b32 v57, 3, v60
  v_sub_u32 v57, 3, v57
  v_mul_u32_u24 v{vA}, {KCS}, v57
  v_lshrrev_b32 v57, 2, v60
  v_lshlrev_b32 v57, 3, v57
  v_sub_u32 v{vA}, v{vA}, v57
  v_lshl_add_u32 v{vA}, v61, 4, v{vA}
  s_lshl_b32 s25, s{sPAR}, 6
  s_sub_u32 s25, s{sCB}, s25
  s_add_u32 s26, s25, {O_KC + 4056 - 64*62}
  v_add_u32 v{vA}, s26, v{vA}
  v_lshlrev_b32 v{vB}, 5, v60
  v_lshl_add_u32 v{vEP}, v61, 3, v{vB}     ; 32n + 8g
  v_lshl_add_u32 v{vB}, v61, 4, v{vB}
  s_add_u32 s26, s25, {O_HH + 512 - 32 - 384}
  v_add_u32 v{vB}, s26, v{vB}
  s_lshl_b32 s25, s{sPAR}, 9
  s_add_u32 s25, s25, s{sCB}
  v_add_u32 v{vEP}, s25, v{vEP}
  s_lshl_b32 s25, s{sPAR}, 10
  s_add_u32 s25, s25, s{sCB}
  v_add_u32 v{vEXR}, s25, v6
  v_lshrrev_b32 v57, 1, v60
  v_mul_u32_u24 v{vST}, {TS32}, v57
  v_and_b32 v57, 1, v60
  v_lshl_add_u32 v{vST}, v57, 5, v{vST}
  v_lshl_add_u32 v{vST}, v61, 3, v{vST}
  v_bfe_u32 v60, v2, 4, 1            ; th
  v_bfe_u32 v61, v2, 2, 2            ; r
  v_lshl_add_u32 v57, v60, 1, v3
  v_lshlrev_b32 v{vWT}, 10, v57
  v_lshl_add_u32 v{vWT}, v61, 7, v{vWT}
  v_lshrrev_b32 v61, 1, v61
  v_lshl_add_u32 v61, v60, 1, v61
  v_xor_b32 v61, s4, v61
  v_lshl_add_u32 v{vWT}, v61, 5, v{vWT}
  v_and_b32 v61, 3, v2
  v_lshl_add_u32 v{vWT}, v61, 3, v{vWT}
  v_add_u32 v{vWT}, {W1}, v{vWT}
  v_add_u32 v21, 57344, v{vWT}
  s_mov_b32 s40, 0x05040100
  s_mov_b32 s41, 0x07060302""")
    fill = [x for x in fill if not x.strip().startswith(';')]
    E(fill[:8]); del fill[:8]
    for ks in range(16):
        E.wait(lg=f'bf{ks}')
        E(f"  v_mfma_f32_32x32x16_f16 {v(ACC,16)}, {a_(AF+4*ks,4)}, {a_(BF+4*ks,4)}, {'0' if ks == 0 else v(ACC,16)}")
        n = 4 if ks < 15 else 12
        E(fill[:n]); del fill[:n]
    E(fill)
    for r in range(12): E(f"  v_ldexp_f32 v{ACC+r}, v{ACC+r}, s42")
    E(f"""  ds_write2_b32 v{P0}, v{ACC}, v{ACC+1} offset0:0 offset1:1
  ds_write2_b32 v{P0}, v{ACC+2}, v{ACC+3} offset0:2 offset1:3
  ds_write2_b32 v{P1}, v{ACC+4}, v{ACC+5} offset0:0 offset1:1
  ds_write2_b32 v{P2}, v{ACC+6}, v{ACC+7} offset0:0 offset1:1
  ds_write2_b32 v{P3}, v{ACC+8}, v{ACC+9} offset0:0 offset1:34
  ds_write2_b32 v{P3}, v{ACC+10}, v{ACC+11} offset0:68 offset1:102 ;@pt""")
    E.stamp()
    E("  s_waitcnt vmcnt(0)")
    tags = [r + k for r in [XT(i) for i in range(4)] + [ST(i) for i in range(4)] + [SA, CA] for k in (1, 3)]
    E.spin(tagcheck(tags, 64), crit + ["  s_waitcnt vmcnt(0)"], sleep=1)
    E.stamp()
    E.wait(lg='pt')
    E("  s_barrier")
    E(f"""  s_lshl_b32 s25, s3, 6
  s_add_u32 s25, s25, {WS_F1B}
  s_cmp_lg_u32 s4, 0
  s_cbranch_scc1 M_NOF
  s_mov_b64 exec, 1""")
    E.A(f"  buffer_store_dword v{NR}, off, s[16:19], s25 sc1")
    E("  s_mov_b64 exec, -1\nM_NOF:")
    E.stamp()
    D0, D1 = 136, 156
    ga_ = []
    for e in range(19):
        ga_.append(f"  ds_read_b32 v{D0+e}, v{G+e} ;@g{e}")
        ga_.append(f"  ds_read_b32 v{D1+e}, v{G+e} offset:{O_P1} ;@g{e}")
    ga_.append("  ds_write_b128 v56, v[52:55]")
    kx = L_()
    for j in range(10):
        kx.append(E.W(lg=f'g{min(2*j+1,18)}'))
        if j < 9: kx(f"  v_pk_add_f32 {v(D0+2*j,2)}, {v(D0+2*j,2)}, {v(D1+2*j,2)}")
        else: kx(f"  v_add_f32 v{D0+18}, v{D0+18}, v{D1+18}")
    for e in (16, 17, 18): kx(f"  v_cndmask_b32 v{D0+e}, 0, v{D0+e}, s[44:45]")
    KP = 176
    for c in range(4):
        for j in range(8): kx(f"  v_cvt_pk_bf16_f32 v{KP+8*c+j}, v{D0+2*j+c}, v{D0+2*j+c+1}")
        kx(f"  ds_write_b128 v63, {v(KP+8*c,4)} offset:{O_KC + KCS*c}")
        kx(f"  ds_write_b128 v63, {v(KP+8*c+4,4)} offset:{O_KC + KCS*c + 16}")
    hp = L_()
    XF = 64; RR = 208; PK = 80
    xs = lambda k: XT(k // 2) + 2 * (k % 2); ss = lambda k: ST(k // 2) + 2 * (k % 2)
    for k in range(8): hp(f"  v_lshlrev_b32 v{RR+2*k}, 16, v{ss(k)}")
    for k in range(8): hp(f"  v_rcp_f32 v{RR+2*k}, v{RR+2*k}")
    for k in range(8): hp(f"  v_and_b32 v{ss(k)}, 0xffff0000, v{ss(k)}")
    for k in range(8): unpack2(hp, XF + 2 * k, XF + 2 * k + 1, xs(k))
    hp(f"""  v_add_f32 v{CA}, 1.0, v{CA}
  v_add_f32 v{CA+1}, 1.0, v{CA+2}
  v_mov_b32 v{SA+1}, v{SA+2}
  v_cvt_pk_bf16_f32 v{CA+1}, v{CA}, v{CA+1}
  v_lshlrev_b32 v{CA}, 16, v{CA+1}
  v_and_b32 v{CA+1}, 0xffff0000, v{CA+1}""")
    def rnd():
        for k in range(8): hp(f"  v_cvt_pk_bf16_f32 v{PK+k}, v{XF+2*k}, v{XF+2*k+1}")
        for k in range(8): unpack2(hp, XF + 2 * k, XF + 2 * k + 1, PK + k)
    for k in range(8): hp(f"  v_pk_add_f32 {v(XF+2*k,2)}, {v(XF+2*k,2)}, {v(ss(k),2)} {bc} neg_lo:[0,1] neg_hi:[0,1]")
    rnd()
    for k in range(8): hp(f"  v_pk_mul_f32 {v(XF+2*k,2)}, {v(XF+2*k,2)}, {v(RR+2*k,2)} {bc}")
    rnd()
    for k in range(8): hp(f"  v_pk_mul_f32 {v(XF+2*k,2)}, {v(XF+2*k,2)}, {v(CA,2)}")
    rnd()
    for k in range(8): hp(f"  v_pk_add_f32 {v(XF+2*k,2)}, {v(XF+2*k,2)}, {v(SA,2)}")
    for c in range(2):
        for i in range(4): hp(f"  v_cvt_pk_bf16_f32 v{PK+4*c+i}, v{XF+4*i+c}, v{XF+4*i+2+c}")
        for i in range(4): hp(f"  ds_write_b32 v{vHW}, v{PK+4*c+i} offset:{c*CB + O_HH + 512 + 256*i}")
    for c in range(2):
        for i in range(4): hp(f"  v_perm_b32 v{PK+8+4*c+i}, v{XT(i)+2}, v{XT(i)}, s{40+c}")
        for i in range(4): hp(f"  ds_write_b32 v{vHW}, v{PK+8+4*c+i} offset:{c*CB + O_XX + 256*i}")
    weave(E, hp[:60], ga_, 1.5)
    E.stamp()
    return kx + hp[60:], wdma, NB1
```

```python
import re

TRANS = ('v_exp_f32', 'v_log_f32', 'v_rcp_f32', 'v_rsq_f32', 'v_sqrt_f32', 'v_sin_f32', 'v_cos_f32', 'v_rcp_iflag_f32')
_reg_re = re.compile(r'\b([vsa])(\d+)\b|\b([vsa])\[(\d+):(\d+)\]|\b(vcc|exec|m0|scc)\b|\b(vcc_lo|vcc_hi|exec_lo|exec_hi)\b')

def regs_of(text):
    out = []
    for m in _reg_re.finditer(text):
        if m.group(1): out.append((m.group(1), int(m.group(2))))
        elif m.group(3): out += [(m.group(3), i) for i in range(int(m.group(4)), int(m.group(5)) + 1)]
        elif m.group(6): out.append((m.group(6), 0))
        elif m.group(7): out.append((m.group(7).split('_')[0], 0))
    return out

def split_ops(s):
    ops, depth, cur = [], 0, ''
    for ch in s:
        if ch == '[': depth += 1
        if ch == ']': depth -= 1
        if ch == ',' and depth == 0:
            ops.append(cur.strip()); cur = ''
        else: cur += ch
    if cur.strip(): ops.append(cur.strip())
    return ops

class Ins:
    def __init__(self, text):
        self.text = text
        t = text.split(';')[0].strip()
        self.label = None; self.op = None
        self.dst = set(); self.src = set(); self.kind = None
        self.srcA = set(); self.srcC = set(); self.data = set()
        self.target = None; self.ws = 1
        if not t or t.startswith('.'):
            self.kind = 'dir'; self.ws = 0; return
        if t.endswith(':'):
            self.label = t[:-1]; self.kind = 'label'; self.ws = 0; return
        parts = t.split(None, 1)
        op = parts[0]; rest = parts[1] if len(parts) > 1 else ''
        self.op = op
        ops = split_ops(rest)
        if ops:
            last = ops[-1]
            mm = re.match(r'^(\S+(?:\s*\[[^\]]*\])?)(.*)$', last)
            mods = mm.group(2); ops[-1] = mm.group(1)
        else: mods = ''
        self.mods = mods; self.ops = ops
        R = lambda i: set(regs_of(ops[i])) if i < len(ops) else set()
        allsrc = lambda a: set().union(*[R(i) for i in range(a, len(ops))]) if len(ops) > a else set()
        base = re.sub(r'_(e32|e64|dpp|sdwa)$', '', op)
        self.base = base
        self.dpp = op.endswith('_dpp') or bool(re.search(r'quad_perm|row_|wave_', mods))
        if op == 's_nop':
            self.kind = 'nop'; self.ws = int(ops[0], 0) + 1
        elif op.startswith('s_cbranch') or op == 's_branch':
            self.kind = 'branch'; self.target = ops[0]
        elif op in ('s_endpgm',):
            self.kind = 'end'
        elif op.startswith('s_load') or op.startswith('s_buffer_load') or op.startswith('s_memtime') or op.startswith('s_memrealtime'):
            self.kind = 'smem'; self.dst = R(0); self.src = allsrc(1)
        elif op.startswith('s_'):
            self.kind = 'salu'
            if op.startswith('s_cmp') or op in ('s_waitcnt', 's_barrier', 's_setprio', 's_sleep', 's_bitcmp0_b32', 's_bitcmp1_b32'):
                self.src = allsrc(0)
            else:
                self.dst = R(0); self.src = allsrc(1)
                if 'saveexec' in op: self.dst |= {('exec', 0)}
        elif op.startswith('v_mfma'):
            self.kind = 'mfma'; self.dst = R(0); self.srcA = R(1) | R(2); self.srcC = R(3); self.src = self.srcA | self.srcC
            self.passes = 8 if '32x32x16' in op else (4 if '16x16x32' in op else 16)
        elif op.startswith('v_'):
            self.kind = 'valu'
            self.dst = R(0); self.src = allsrc(1)
            if base.startswith('v_permlane') and 'swap' in base:
                self.dst = R(0) | R(1); self.src = R(0) | R(1)
            if base in ('v_fmac_f32', 'v_dot2c_f32_bf16', 'v_pk_fmac_f16', 'v_writelane_b32') or self.dpp:
                self.src |= R(0)
            if base in ('v_add_co_u32', 'v_sub_co_u32', 'v_addc_co_u32', 'v_subb_co_u32', 'v_mad_u64_u32', 'v_div_scale_f32'):
                self.dst = R(0) | R(1); self.src = allsrc(2)
            if base.startswith('v_cmpx'): self.dst |= {('exec', 0)}
        elif op.startswith('ds_'):
            self.kind = 'ds'
            if 'read' in op or 'bpermute' in op or 'permute' in op or 'swizzle' in op or '_rtn' in op:
                self.dst = R(0); self.src = allsrc(1)
            else:
                self.src = allsrc(0)
            if 'addtid' in op: self.src |= {('m0', 0)}
        elif op.startswith('buffer_') or op.startswith('global_') or op.startswith('flat_'):
            self.kind = 'vmem'
            self.lds = bool(re.search(r'\blds\b', mods)) or '_lds_' in op
            if op in ('buffer_inv', 'buffer_wbl2'):
                pass
            elif 'load' in op and not self.lds:
                self.dst = R(0); self.src = allsrc(1)
                if 'd16' in op: self.src |= R(0)
            elif 'load' in op:
                self.src = allsrc(0) | {('m0', 0)}
            elif 'atomic' in op:
                self.src = allsrc(0)
                if 'sc0' in mods: self.dst = R(0)
            else:
                self.src = allsrc(0)
                di = 0 if op.startswith('buffer_') else 1
                if re.search(r'x[34]$', op): self.data = R(di)
        else:
            raise ValueError('unknown op ' + text)

def need(P, C):
    n = 0
    isv = lambda s: {r for r in s if r[0] in 'va'}
    iss = lambda s: {r for r in s if r[0] in ('s', 'vcc')}
    if P.kind == 'valu':
        vw = isv(P.dst); sw = iss(P.dst)
        if C.kind == 'mfma' and vw & C.src: n = max(n, 2)
        if C.kind == 'valu':
            if C.dpp and vw & C.src: n = max(n, 2)
            if C.base.startswith('v_permlane') and vw & C.src: n = max(n, 2)
            if C.base in ('v_readlane_b32', 'v_readfirstlane_b32') and vw & C.src: n = max(n, 1)
            if sw & C.src:
                n = max(n, 4 if C.base in ('v_readlane_b32', 'v_writelane_b32', 'v_div_fmas_f32') else 2)
            if ('vcc', 0) in sw and C.base == 'v_div_fmas_f32': n = max(n, 4)
        if P.base in TRANS and vw & C.src and not (C.kind == 'valu' and C.base in TRANS): n = max(n, 1)
        if P.base.startswith('v_dot'):
            if C.kind in ('valu', 'mfma', 'ds', 'vmem'):
                if C.kind == 'valu' and C.base == P.base:
                    srcab = set(regs_of(C.ops[1])) | set(regs_of(C.ops[2]))
                    if vw & srcab: n = max(n, 3)
                elif vw & (C.src | C.dst): n = max(n, 3)
        if C.kind == 'vmem' and sw & C.src: n = max(n, 5)
        if C.kind in ('salu', 'smem', 'branch') and sw & C.src: n = max(n, 1)
        if ('exec', 0) in P.dst:
            if C.kind == 'mfma': n = max(n, 4)
            if C.kind == 'valu': n = max(n, 5 if C.dpp else 4)
        if 'sdwa' in P.op and 'dst_sel:DWORD' not in P.mods and vw & (C.src | C.dst): n = max(n, 1)
    if P.kind == 'mfma':
        p = P.passes
        t = {4: (6, 8, 3), 8: (10, 12, 7), 16: (18, 20, 15)}[p]
        if C.kind == 'mfma':
            if P.dst & C.srcA: n = max(n, t[1])
            if P.dst & C.srcC and not (P.dst == C.srcC and C.passes == p): n = max(n, t[0])
            if P.dst & C.dst and not (P.dst == C.srcC and C.passes == p): n = max(n, t[0])
        elif C.kind in ('valu', 'ds', 'vmem'):
            if P.dst & (C.src | C.dst): n = max(n, t[1])
            if P.srcC & C.dst: n = max(n, t[2])
    if P.kind == 'salu' and ('m0', 0) in P.dst and C.kind in ('vmem', 'ds') and ('m0', 0) in C.src: n = max(n, 1)
    if P.kind == 'vmem' and P.data and P.data & C.dst:
        n = max(n, 2 if C.kind == 'valu' else 1)
    return n

class Prog:
    def __init__(self):
        self.lines = []
    def __call__(self, text):
        for l in text.split('\n'):
            if l.strip(): self.lines.append(l.rstrip())
    def fix(self, verbose=False):
        ins = [Ins(l) for l in self.lines]
        labels = {x.label: i for i, x in enumerate(ins) if x.label}
        preds = [[] for _ in ins]
        for i, x in enumerate(ins):
            if i + 1 < len(ins) and not (x.kind == 'end' or x.op == 's_branch'): preds[i + 1].append(i)
            if x.kind == 'branch' and x.target in labels: preds[labels[x.target]].append(i)
        pad = [0] * len(ins); added = 0
        for i, C in enumerate(ins):
            if C.kind in ('dir', 'label', 'nop', 'end'): continue
            worst = 0
            stack = [(p, 0) for p in preds[i]]; seen = {}
            while stack:
                j, dist = stack.pop()
                if dist >= 20 or seen.get(j, 99) <= dist: continue
                seen[j] = dist
                P = ins[j]
                if P.kind not in ('dir', 'label', 'nop', 'end'):
                    k = need(P, C) - dist
                    if k > worst: worst = k; why = P.text
                for p in preds[j]: stack.append((p, dist + P.ws + pad[j]))
            if worst > 0:
                if verbose: print(f'pad {worst}: [{why.strip()}] -> [{C.text.strip()}]')
                pad[i] = worst; added += 1
        out = []
        for i, x in enumerate(ins):
            w = pad[i]
            while w > 0:
                k = min(w, 16); out.append(f'  s_nop {k-1}'); w -= k
            out.append(x.text)
        self.lines = out
        return added
    def text(self): return '\n'.join(self.lines) + '\n'
```

```python
import struct, math, os, re
from asmlib import Prog

L, D, F, NM = 2048, 448, 1792, 256
NAUX, NMAIN = 32, 224
WS_LN1 = 0
WS_MOD = 0x16000
MODH = 2688 * 8
WS_F1B = 0xA000
WS_FA = 0xD800
WS_FH = 0xE000
WS_LN2 = 0x12000
TS32 = 28672 + 256
WS_X1C = 0x24000
WS_X1 = 0x1F0000
WS_H = 0x3C0000
WS_WD = 0xAC0000
PS = 16384 + 128
WS_XT = 0xC50000
WS_DBG = 0xFE0000
WS_END = 0x1400000
WS_PROF = 0x1000000
KA = dict(x=0, A_re=8, A_im=16, B_re=24, B_im=32, C_re=40, C_im=48, log_dt=56, Dskip=64, B_x=72,
          w_gate=80, w_up=88, w_down=96, c=104, w_mod=112, out=120, dbg=128, ws=136)

def f2u(x): return struct.unpack('<I', struct.pack('<f', x))[0]
def u2f(u): return struct.unpack('<f', struct.pack('<I', u))[0]
def fh(x): return f'0x{f2u(x):08x}'
LOG2E = 1.4426950408889634
INV2PI = 1.0 / (2 * math.pi)
INV2PI_HI = u2f(f2u(INV2PI)); INV2PI_LO = INV2PI - INV2PI_HI

def v(a, n=1): return f'v{a}' if n == 1 else f'v[{a}:{a+n-1}]'
def a_(a, n=1): return f'a{a}' if n == 1 else f'a[{a}:{a+n-1}]'
def s(a, n=1): return f's{a}' if n == 1 else f's[{a}:{a+n-1}]'

def srd(A, d, base, nbytes):
    A(f"""  s_mov_b32 s{d}, s{base}
  s_and_b32 s{d+1}, s{base+1}, 0xffff
  s_mov_b32 s{d+2}, {nbytes:#x}
  s_mov_b32 s{d+3}, 0x20000""")

def cmul(A, P, X, W):
    A(f"  v_pk_mul_f32 {v(P,2)}, {v(X,2)}, {v(W,2)} op_sel:[0,0] op_sel_hi:[1,0]")
    A(f"  v_pk_fma_f32 {v(P,2)}, {v(X,2)}, {v(W,2)}, {v(P,2)} op_sel:[1,1,0] op_sel_hi:[0,1,1] neg_lo:[1,0,0]")

def unpack2(A, dlo, dhi, src):
    A(f"  v_lshlrev_b32 v{dlo}, 16, v{src}")
    A(f"  v_and_b32 v{dhi}, 0xffff0000, v{src}")

def descriptor(name, vgpr, sgpr, accum):
    return f""".amdhsa_kernel {name}
  .amdhsa_next_free_vgpr {vgpr}
  .amdhsa_next_free_sgpr {sgpr}
  .amdhsa_accum_offset {accum}
  .amdhsa_group_segment_fixed_size 0
  .amdhsa_kernarg_size 144
  .amdhsa_user_sgpr_count 2
  .amdhsa_user_sgpr_kernarg_segment_ptr 1
  .amdhsa_system_sgpr_workgroup_id_x 1
  .amdhsa_float_denorm_mode_32 3
.end_amdhsa_kernel
"""

class L_(list):
    def __call__(self, t): self.extend([x for x in t.split('\n') if x.strip()])

PROF = int(os.environ.get('PROF', '0'))
BUD = 31
NON = 30

class Em:
    def __init__(self, A, name):
        self.A = A; self.vm = []; self.lg = []; self.vm_done = 0; self.lg_done = 0
        self.slow = []; self.name = name; self.nst = 0; self.nspin = 0
    def __call__(self, item):
        if item is None: return
        if isinstance(item, (list, tuple)):
            for x in item: self(x)
            return
        if callable(item): item(); return
        for l in item.split('\n'):
            t = l.strip()
            if not t or t.startswith(';'): continue
            op = t.split()[0]
            m = re.search(r';@(\S+)', l); tag = m.group(1) if m else None
            if op.startswith('ds_'):
                self.lg.append(tag)
            elif op.startswith('buffer_') or op.startswith('global_'):
                self.vm.append(tag)
                assert len(self.vm) - self.vm_done <= 63 or True
            elif op == 's_waitcnt':
                m = re.search(r'vmcnt\((\d+)\)', t)
                if m: self.vm_done = max(self.vm_done, len(self.vm) - int(m.group(1)))
                m = re.search(r'lgkmcnt\((\d+)\)', t)
                if m: self.lg_done = max(self.lg_done, len(self.lg) - int(m.group(1)))
            self.A(l)
    def _cnt(self, lst, done, tags, cap):
        if isinstance(tags, str): tags = [tags]
        idx = -1
        for t in tags:
            c = [i for i, x in enumerate(lst) if x == t]
            assert c, f'tag {t} not issued'
            idx = max(idx, c[-1])
        if idx < done: return None
        return min(len(lst) - 1 - idx, cap)
    def wait(self, vm=None, lg=None):
        p = []
        if vm is not None:
            n = self._cnt(self.vm, self.vm_done, vm, 63)
            if n is not None: p.append(f'vmcnt({n})')
        if lg is not None:
            n = self._cnt(self.lg, self.lg_done, lg, 15)
            if n is not None: p.append(f'lgkmcnt({n})')
        if p: self('  s_waitcnt ' + ' '.join(p))
    def W(self, vm=None, lg=None): return lambda: self.wait(vm, lg)
    def fork(self, name):
        e = Em(self.A, name); e.vm = list(self.vm); e.lg = list(self.lg); e.vm_done = self.vm_done; e.lg_done = self.lg_done; e.nst = self.nst
        return e
    def issued(self, tag): return tag in self.vm or tag in self.lg
    def lg_out(self): return len(self.lg) - self.lg_done
    def spin(self, check, reload, sleep=2):
        n = self.nspin; self.nspin += 1
        S, R = f'{self.name}_SLOW{n}', f'{self.name}_RET{n}'
        self(check)
        self(f"  s_cbranch_vccnz {S}\n{R}:")
        o = L_()
        o(f"""{S}:
  s_cmp_eq_u32 s{BUD}, 0
  s_cbranch_scc1 {R}
  s_sub_u32 s{BUD}, s{BUD}, 1
  s_sleep {sleep}""")
        for x in reload: o(x)
        for x in check: o(x)
        o(f"  s_cbranch_vccnz {S}\n  s_branch {R}")
        self.slow += o
    def flush_slow(self):
        for x in self.slow: self.A(re.sub(r';@\S+', '', x))
        self.slow = []
    def stamp(self, g='b'):
        if not PROF or g not in os.environ.get('PROFG', 'b'): return
        i = self.nst; self.nst += 1
        assert i < 15
        if i == 0: self.A("  s_memrealtime s[68:69]")
        self.A(f"  s_memtime s[{72+2*i}:{73+2*i}]")
    def stamp_flush(self, wave_sgpr=4, vt=(2, 3)):
        if not PROF: return
        A = self.A
        A(f"""  s_memrealtime s[70:71]
  s_waitcnt lgkmcnt(0) vmcnt(0)
  s_mov_b64 exec, -1
  s_lshl_b32 s25, s2, 3
  s_add_u32 s25, s25, s{wave_sgpr}
  s_lshl_b32 s25, s25, 7
  s_add_u32 s25, s25, {WS_PROF}
  v_mov_b32 v{vt[0]}, 0""")
        vals = ['s68', 's70', f's{BUD}', str(self.nst)] + [f's{72+2*i}' for i in range(self.nst)]
        if PROF == 2:
            main = self.name == 'MC'
            if self.name not in ('MC', 'AX'): return
            sel = list(range(1, self.nst))[-11:] if main else list(range(1, 5))
            A(f"  s_lshl_b32 s26, s2, 3\n  s_add_u32 s26, s26, s{wave_sgpr}\n  s_cmp_lg_u32 s26, {800 if main else 40}\n  s_cbranch_scc1 {self.name}_NODBG")
            srd(A, 20, 64, 256)
            for j, i in enumerate(sel):
                A(f"  s_sub_u32 s26, s{72+2*i}, s72\n  v_mov_b32 v{vt[1]}, s26\n  buffer_store_dword v{vt[1]}, off, s[20:23], 0 offset:{4*(j + (1 if main else 12))}")
            A(f"{self.name}_NODBG:")
        for j, sv in enumerate(vals):
            A(f"  v_mov_b32 v{vt[1]}, {sv}\n  buffer_store_dword v{vt[1]}, v{vt[0]}, s[16:19], s25 offen offset:{4*j}")

def weave(E, prim, bg, every, start=0):
    bg = list(bg); acc = 0.0
    for i, x in enumerate(prim):
        E(x)
        if i >= start:
            acc += 1.0
            while acc >= every and bg:
                E(bg.pop(0)); acc -= every
    for x in bg: E(x)

def tagcheck(tags, tmp):
    o = []; tags = list(tags)
    if len(tags) % 2: tags.append(tags[-1])
    r = []
    for i in range(0, len(tags), 2):
        o.append(f"  v_bitop3_b32 v{tmp+len(r)}, v{tags[i]}, s{NON}, v{tags[i+1]} bitop3:0x7e"); r.append(tmp + len(r))
    while len(r) > 1:
        n = []
        while r:
            g = r[:3]; r = r[3:]
            if len(g) == 3: o.append(f"  v_or3_b32 v{g[0]}, v{g[0]}, v{g[1]}, v{g[2]}")
            elif len(g) == 2: o.append(f"  v_or_b32 v{g[0]}, v{g[0]}, v{g[1]}")
            n.append(g[0])
        r = n
    o.append(f"  v_cmp_ne_u32 vcc, 0, v{r[0]}")
    return o
```

```python
from common import *
from m_front import *
P = 960; O_WD = 16384; O_L2 = 81920

def aux(A, E0):
    A("AUX:")
    E = E0.fork('AX')
    H = E0.fork('AH')
    A(f"""  s_cmp_ge_u32 s2, 14
  s_cselect_b32 s5, 1, 0             ; half
  s_mul_i32 s6, s5, 14
  s_sub_u32 s6, s2, s6
  s_min_u32 s6, s6, 13
  s_lshl_b32 s40, s6, 7
  s_cmp_ge_u32 s6, 7
  s_cselect_b32 s25, 896, 0
  s_add_u32 s41, s40, s25
  s_add_u32 s41, s41, 1792
  s_add_u32 s42, s41, 896""")
    srd(A, 12, 60, 448 * 5376)
    srd(A, 36, 58, 896)
    srd(A, 44, 56, F * 896)
    A(f"""  v_lshrrev_b32 v16, 3, v2           ; r
  s_mul_i32 s25, s5, 224
  s_mul_i32 s26, s{sCW}, 56
  s_add_u32 s25, s25, s26
  v_add_u32 v16, s25, v16
  v_and_b32 v17, 7, v2
  v_mul_u32_u24 v18, 5376, v16
  v_lshl_add_u32 v18, v17, 4, v18    ; w voffset
  v_lshlrev_b32 v19, 1, v16          ; c voffset
  s_cmp_lg_u32 s{sHL}, 0
  s_cbranch_scc1 AUXH""")
    C = 32
    WM = lambda st, i: (96 if st < 2 else 0) + 4 * i
    def cloads(E):
        for i in range(7): E(f"  buffer_load_ushort v{C+i}, v19, s[36:39], 0 offen offset:{16*i} ;@c")
    def mloads(E, st):
        for i in range(7):
            E(f"  s_add_u32 s25, s{40+st}, {8*5376*i}")
            r = v(WM(st, i), 4) if st < 2 else a_(WM(st, i), 4)
            E(f"  buffer_load_dwordx4 {r}, v18, s[12:15], s25 offen {NT} ;@m{st}_{i}")
    def addrs(E):
        E(f"""  v_lshrrev_b32 v20, 4, v2
  s_lshl_b32 s25, s{sCW}, 2
  v_add_u32 v20, s25, v20
  v_lshlrev_b32 v20, 8, v20
  v_lshl_add_u32 v20, v17, 5, v20    ; + sub*32
  v_lshlrev_b32 v21, 2, v2
  v_lshlrev_b32 v22, 3, v2
  s_mov_b32 s28, 0x00ff00ff
  s_mov_b32 s29, 0x00ff00ff""")
    def silu(E):
        E.wait(vm='c')
        for i in range(7): E(f"  v_lshlrev_b32 v{C+i}, 16, v{C+i}")
        for i in range(7): E(f"  v_mul_f32 v{C+8+i}, {fh(-LOG2E)}, v{C+i}")
        for i in range(7): E(f"  v_exp_f32 v{C+8+i}, v{C+8+i}")
        for i in range(7): E(f"  v_add_f32 v{C+8+i}, 1.0, v{C+8+i}")
        for i in range(7): E(f"  v_rcp_f32 v{C+8+i}, v{C+8+i}")
        for i in range(7): E(f"  v_mul_f32 v{C+i}, v{C+i}, v{C+8+i}")
        for i in range(7): E(f"  v_cvt_pk_bf16_f32 v{C+i}, 0, v{C+i}")
    def modset(E, st):
        acc = 40; lds = 4096 * st
        for i in range(7):
            E.wait(vm=f'm{st}_{i}')
            t = 60 + 8 * (i % 2); src = 96 + 4 * i
            if st == 2:
                for j in range(4): E(f"  v_accvgpr_read_b32 v{src+j}, a{4*i+j}")
            for j in range(4): unpack2(E, t + 2 * j, t + 2 * j + 1, src + j)
            sp = C + (i // 2) * 2; sel = i % 2
            for j in range(4):
                if i == 0: E(f"  v_pk_mul_f32 {v(acc+2*j,2)}, {v(t+2*j,2)}, {v(sp,2)} op_sel:[0,{sel}] op_sel_hi:[1,{sel}]")
                else: E(f"  v_pk_fma_f32 {v(acc+2*j,2)}, {v(t+2*j,2)}, {v(sp,2)}, {v(acc+2*j,2)} op_sel:[0,{sel},0] op_sel_hi:[1,{sel},1]")
        for j in range(8): E(f"  v_add_f32_dpp v{acc+j}, v{acc+j}, v{acc+j} row_ror:8 row_mask:0xf bank_mask:0xf")
        E(f"""  s_mov_b64 exec, s[28:29]
  ds_write_b128 v20, {v(acc,4)} offset:{lds}
  ds_write_b128 v20, {v(acc+4,4)} offset:{lds+16}
  s_mov_b64 exec, -1
  s_waitcnt lgkmcnt(0)""")
    def modfin(st):
        lbl = f'AX_M{st}'; lds = 4096 * st; R = 60
        A(f"""  s_cmp_lg_u32 s4, {5+st}
  s_cbranch_scc1 {lbl}
  s_cmp_ge_u32 s2, 28
  s_cbranch_scc1 {lbl}""")
        for r in range(8): A(f"  ds_read2st64_b32 {v(R+2*r,2)}, v21 offset0:{lds//256 + 2*r} offset1:{lds//256 + 2*r + 1}")
        A(f"""  s_lshl_b32 s25, s{40+st}, 2
  s_mul_i32 s26, s5, {MODH}
  s_add_u32 s25, s25, s26
  s_add_u32 s25, s25, {WS_MOD}
  s_waitcnt lgkmcnt(0)""")
        n = 8
        while n > 1:
            n //= 2
            for r in range(n): A(f"  v_pk_add_f32 {v(R+2*r,2)}, {v(R+2*r,2)}, {v(R+2*r+2*n,2)}")
        A(f"""  v_add_f32 v{R}, v{R}, v{R+1}
  v_mov_b32 v{R+1}, s{NON}
  buffer_store_dwordx2 {v(R,2)}, v22, s[16:19], s25 offen sc1
{lbl}:""")
    def wddma(E):
        E(f"""  s_min_u32 s7, s2, 27
  s_lshl_b32 s25, s7, 6
  s_lshl_b32 s26, s4, 3
  s_add_u32 s25, s25, s26
  s_mul_i32 s25, s25, 896
  s_mul_i32 s26, s4, {8*P}
{EX56}""")
        for r_ in range(8):
            E(f"  s_add_u32 m0, s26, {O_WD + P*r_}")
            if r_ == 4: E("  s_add_u32 s25, s25, 3584")
            else: E("  s_nop 0")
            E.A.lines[-2] = f"  s_add_u32 m0, s26, {O_WD + P*r_ - 896*(r_%4)}"
            E(f"  buffer_load_dwordx4 v6, s[44:47], s25 offen offset:{896*(r_%4)} {NT} lds ;@wd")
        E(EXALL)
    cloads(E); mloads(E, 0)
    E.stamp()
    addrs(E)
    produce_c(E, 60)
    E.stamp()
    silu(E); modset(E, 0)
    E("  s_barrier")
    E.stamp()
    mloads(E, 2); wddma(E); E(non_load())
    E("  s_barrier")
    modset(E, 2)
    E("  s_barrier")
    E.stamp()
    get_nonce(E)
    E("  s_branch AX_J")
    H(f"AUXH:\n  s_sleep {os.environ.get('A_SLP', 10)}")
    H(non_load())
    addrs(H)
    produce_h(H, 60)
    H.stamp()
    cloads(H); mloads(H, 1); wddma(H)
    H("  s_barrier")
    modfin(0)
    H.stamp()
    silu(H); modset(H, 1)
    H("  s_barrier")
    modfin(1)
    H.stamp()
    H("  s_barrier")
    modfin(2)
    H.stamp()
    J = Em(A, 'AJ'); J.nst = 5
    J(f"""AX_J:
  v_bfe_u32 v5, v2, 4, 1             ; dhalf
  v_bfe_u32 v7, v2, 2, 2             ; r
  v_lshl_add_u32 v4, v3, 2, v7       ; 4g + r
  v_mul_u32_u24 v4, {P}, v4
  v_lshl_add_u32 v4, v5, 5, v4
  v_and_b32 v7, 3, v2                ; c
  v_lshl_add_u32 v4, v7, 3, v4
  s_lshr_b32 s24, s4, 1
  s_and_b32 s27, s4, 1
  s_mul_i32 s25, s24, {16*P}
  s_mul_i32 s26, s27, {7*64}
  s_add_u32 s25, s25, s26
  v_add_u32 v4, s25, v4
  s_lshl_b32 s25, s7, 2
  s_add_u32 s25, s25, s24            ; ks
  s_lshl_b32 s25, s25, 10
  s_mul_i32 s26, s27, {7*112*1024}
  s_add_u32 s25, s25, s26
  s_add_u32 s25, s25, {WS_WD}
  s_waitcnt vmcnt(0)
  s_barrier
  s_cmp_ge_u32 s2, 28
  s_cbranch_scc1 AX_NOWD""")
    for j in range(7):
        J(f"  ds_read_b64_tr_b16 {v(64+4*j,2)}, v4 offset:{O_WD + 64*j}")
        J(f"  ds_read_b64_tr_b16 {v(66+4*j,2)}, v4 offset:{O_WD + 64*j + 8*P} ;@t{j}")
    for j in range(7):
        J.wait(lg=f't{j}')
        J(f"  buffer_store_dwordx4 {v(64+4*j,4)}, v6, s[16:19], s25 offen sc1")
        if j < 6: J(f"  s_add_u32 s25, s25, {112*1024}")
    J(f"""AX_NOWD:
  v_and_b32 v8, 255, v0
  v_min_u32 v8, 223, v8
  v_lshlrev_b32 v8, 6, v8
  s_mov_b32 s42, {WS_F1B}
  s_min_u32 s25, s4, 6
  s_lshl_b32 s25, s25, 12
  s_mul_i32 s40, s2, {TS32}
  s_add_u32 s40, s40, s25
  s_add_u32 s40, s40, {WS_X1}
  s_lshl_b32 s41, s2, 8
  s_add_u32 s41, s41, {WS_LN2}
  v_lshrrev_b32 v9, 4, v2
  s_lshl_b32 s25, s4, 2
  v_add_u32 v9, s25, v9
  v_lshlrev_b32 v9, 8, v9
  v_lshl_add_u32 v9, v7, 5, v9
  v_add_u32 v9, {O_L2}, v9
  v_add_u32 v10, {O_L2}, v21
  s_mov_b32 s28, 0x000f000f
  s_mov_b32 s29, 0x000f000f
  s_waitcnt vmcnt(0)
  s_barrier
  s_lshl_b32 s25, s2, 6
  s_add_u32 s25, s25, {WS_FA}
  s_cmp_lg_u32 s4, 7
  s_cbranch_scc1 AX_NOFA
  s_mov_b64 exec, 1
  buffer_store_dword v{NR}, off, s[16:19], s25 sc1
  s_mov_b64 exec, -1
AX_NOFA:""")
    J.stamp()
    f1l = "  buffer_load_dword v11, v8, s[16:19], s42 offen sc1"
    J(f1l); J("  s_waitcnt vmcnt(0)")
    J.spin([f"  v_cmp_ne_u32 vcc, s{NON}, v11"], [f1l, "  s_waitcnt vmcnt(0)"], sleep=8)
    J("  s_barrier")
    J.stamp()
    d0 = int(os.environ.get('A_D0', 4)); d1 = int(os.environ.get('A_D1', 8))
    J(f"""  s_cmp_lt_u32 s2, 16
  s_cbranch_scc1 AX_S0
  s_sleep {d1}
AX_S0:
  s_sleep {d0}""")
    R = 64; S = 80; Qq = 88; T = 96
    for t in range(2):
        ld = [f"  buffer_load_dwordx4 {v(R+4*p,4)}, v6, s[16:19], s40 offen offset:{1024*p} sc1" for p in range(4)] + ["  s_waitcnt vmcnt(0)"]
        J(ld)
        chk = [f"  v_max3_u32 v{T+j}, v{R+3*j}, v{R+3*j+1}, v{R+3*j+2}" for j in range(5)]
        chk += [f"  v_max3_u32 v{T}, v{T}, v{T+1}, v{T+2}", f"  v_max3_u32 v{T+3}, v{T+3}, v{T+4}, v{R+15}",
                f"  v_max_u32 v{T}, v{T}, v{T+3}", f"  v_cmp_eq_u32 vcc, -1, v{T}"]
        J.spin(chk, ld, sleep=6)
        if t == 0: J.stamp()
        for p in range(4):
            for j in range(4): unpack2(J, T + 2 * j, T + 2 * j + 1, R + 4 * p + j)
            for j in range(8):
                if p == 0: J(f"  v_mov_b32 v{S+j}, v{T+j}\n  v_mul_f32 v{Qq+j}, v{T+j}, v{T+j}")
                else: J(f"  v_add_f32 v{S+j}, v{S+j}, v{T+j}\n  v_fmac_f32 v{Qq+j}, v{T+j}, v{T+j}")
        for m in ('row_ror:4', 'row_ror:8'):
            for j in range(16): J(f"  v_add_f32_dpp v{S+j}, v{S+j}, v{S+j} {m} row_mask:0xf bank_mask:0xf")
        o = 8192 * t
        J(f"""  s_mov_b64 exec, s[28:29]
  ds_write_b128 v9, {v(S,4)} offset:{o}
  ds_write_b128 v9, {v(S+4,4)} offset:{o+16}
  ds_write_b128 v9, {v(Qq,4)} offset:{o+128}
  ds_write_b128 v9, {v(Qq+4,4)} offset:{o+144}
  s_mov_b64 exec, -1
  s_add_u32 s40, s40, {32*TS32}
  s_waitcnt lgkmcnt(0)
  s_barrier
  s_cmp_lg_u32 s4, 7
  s_cbranch_scc1 AX_L{t}""")
        U = 96
        for r in range(14): J(f"  ds_read2st64_b32 {v(U+2*r,2)}, v10 offset0:{o//256 + 2*r} offset1:{o//256 + 2*r + 1}")
        J("  s_waitcnt lgkmcnt(0)")
        for r in range(7): J(f"  v_pk_add_f32 {v(U+2*r,2)}, {v(U+2*r,2)}, {v(U+14+2*r,2)}")
        for r in range(3): J(f"  v_pk_add_f32 {v(U+2*r,2)}, {v(U+2*r,2)}, {v(U+8+2*r,2)}")
        for r in range(2): J(f"  v_pk_add_f32 {v(U+2*r,2)}, {v(U+2*r,2)}, {v(U+4+2*r,2)}")
        J(f"""  v_pk_add_f32 {v(U,2)}, {v(U,2)}, {v(U+2,2)}
  v_add_f32 v{U+2}, v{U}, v{U+1}
  v_mov_b32 v{U}, v{U+2}
  v_mov_b32 v{U+1}, s{NON}
  v_permlane32_swap_b32 v{U+2}, v{U}""")
        ln_finish(J, U + 2, U)
        J(f"""  s_mov_b32 exec_hi, 0
  buffer_store_dwordx2 {v(U,2)}, v22, s[16:19], s41 offen sc1
  s_mov_b64 exec, -1
AX_L{t}:
  s_add_u32 s41, s41, {32*256}""")
        J.stamp()
    J.name = 'AX'
    J.stamp_flush()
    J("  s_endpgm")
    for e in (E, H, J): e.flush_slow()
```

```python
from common import *
from m_front import *

WF = lambda ks: 4 * ks

def wread(ks):
    o = wblock(ks) - WB0; r = vWT
    if o >= 61440: r = 21; o -= 61440
    return [f"  ds_read_b64_tr_b16 {a_(WF(ks),2)}, v{r} offset:{o}",
            f"  ds_read_b64_tr_b16 {a_(WF(ks)+2,2)}, v{r} offset:{o+512} ;@wf{ks}"]
def wdma(ks):
    return [f"  s_add_u32 m0, s38, {wblock(ks)}",
            f"  s_add_u32 s25, s37, {16*3584*ks}",
            f"  buffer_load_dwordx4 v{vWD}, s[12:15], s25 offen {NTW} lds ;@w{ks}"]

class Q:
    def __init__(self): self.q = []
    def add(self, nb, items):
        for x in items: self.q.append((nb, x))
    def ready(self, n): return bool(self.q) and self.q[0][0] <= n
    def pop(self): return self.q.pop(0)[1]

EXO = lambda s_, t: (1024 * t) if s_ % 2 == 0 else (2048 + 5632 * t)
MF = []
for c in range(8):
    for a in list(range(1, c)) + [0] + ([c] if c else []):
        for b in range(2): MF.append((c, a, b))
ENDC = {c: max(i for i, m in enumerate(MF) if m[0] == c) for c in range(8)}

def conv_loop(E, reg, CA_, hi, lo, per):
    reads = []
    for c in range(8):
        for b in range(2):
            reads.append(f"  ds_read_b128 {reg(4*c+2*b)}, v{vB} offset:{512*c + 256 - 256*b} ;@B{c}_{b}")
            o = 64 * (60 - 8 * c - 4 * b)
            reads.append(f"  ds_read_b64 {reg(4*c+2*b+1, 0)}, v{vA} offset:{o}")
            reads.append(f"  ds_read_b64 {reg(4*c+2*b+1, 1)}, v{vA} offset:{o+8} ;@A{c}_{b}")
    ri = 0
    for _ in range(12): E(reads[ri]); ri += 1
    started = set(); credit = 0.0
    for i, (c, a, b) in enumerate(MF):
        need = [f'A{a}_{b}', f'B{c-a}_{b}']
        while not all(E.issued(t) for t in need): E(reads[ri]); ri += 1
        E.wait(lg=need)
        cc = v(CA_(c), 4) if c in started else '0'
        started.add(c)
        assert c < 4 or E.issued(f'ex{(c-4)//2}')
        E(f"  v_mfma_f32_16x16x32_bf16 {v(CA_(c),4)}, {reg(4*a+2*b+1)}, {reg(4*(c-a)+2*b)}, {cc}")
        credit += per
        while credit >= 1.0:
            ahead = ri // 6 - c
            if ri < len(reads) and (ahead < 2 or not (hi.ready(i) or (lo.ready(i) and ahead >= 3))):
                E(reads[ri]); ri += 1
            elif hi.ready(i): E(hi.pop())
            elif lo.ready(i): E(lo.pop())
            credit -= 1.0
    for q in (hi, lo):
        while q.q: E(q.pop())

def send(CA_, s_, E=None):
    def chk(): assert s_ < 2 or E.issued('A7_1')
    return [chk, f"  ds_write_b128 v{vEXW}, {v(CA_(2*s_),4)} offset:{EXO(s_,0)}",
            f"  ds_write_b128 v{vEXW}, {v(CA_(2*s_+1),4)} offset:{EXO(s_,1)} ;@ex{s_}"]
def bar(E, s_, vm=None, lg=(), lo=None):
    def f():
        for t in list(lg) + ([vm] if vm else []):
            while not E.issued(t): E(lo.pop())
        E.wait(vm=vm, lg=[f'ex{s_}'] + list(lg))
        E("  s_barrier")
    return f

def conv_compute(E, hooks):
    E(f"  v_add_u32 v21, 61440, v{vWT}")
    for ks in range(10): E(wread(ks))
    E("  s_waitcnt lgkmcnt(0)")
    E("  s_barrier")
    E.stamp()
    def reg(n, half=None):
        if n < 11: r, f = 84 + 4 * n, a_
        else: r, f = 44 + 4 * (n - 11), v
        return f(r, 4) if half is None else f(r + 2 * half, 2)
    CA_ = lambda c: 28 + 4 * (c % 4)
    hi = Q(); lo = Q()
    lo.add(1, [wdma(ks) for ks in range(18, 28)])
    for ks in range(10, 18): lo.add(8, wread(ks))
    for s_ in range(3):
        e = ENDC[2 * s_ + 1]
        hi.add(e + 2, send(CA_, s_, E))
        hi.add(e + 3, [bar(E, s_, vm=('w27' if s_ == 2 else None), lg=(['wf17'] if s_ == 1 else []), lo=lo)])
    for ks in range(18, 21): hi.add(0, wread(ks))
    conv_loop(E, reg, CA_, hi, lo, float(os.environ.get('CC_PER', 3.0)))
    E(send(CA_, 3, E))
    E.stamp()
    E(bar(E, 3))

def conv_helper(E, hooks):
    GA = 32
    E(f"""  s_lshl_b32 s46, s{sCH}, 3
  s_add_u32 s46, s46, s39
  s_add_u32 s46, s46, {2*448*8}
  s_add_u32 s47, s46, {2*448*8}
  s_add_u32 s40, s46, {MODH}
  s_add_u32 s41, s47, {MODH}""")
    gl = [f"  buffer_load_dwordx2 {v(GA+2*j,2)}, off, s[16:19], s{sr} sc1 ;@ga" for j, sr in enumerate((46, 40, 47, 41))]
    E(gl)
    E(f"""  s_and_b32 s44, s{sU}, 1
  s_lshl_b32 s25, s44, 10
  s_add_u32 s25, s25, s{sCB}
  v_add_u32 v{vEXR0}, s25, v6
  s_mul_i32 s25, s44, 5632
  s_add_u32 s25, s25, s{sCB}
  s_add_u32 s25, s25, 2048
  v_add_u32 v{vEXR1}, s25, v6
  s_lshl_b32 s25, s44, 9
  s_mul_i32 s26, s{sCH}, 4608
  s_add_u32 s26, s26, s25
  s_add_u32 s26, s26, {HH0 + 512}
  v_add_u32 v21, s26, v{vEP}
  s_lshl_b32 s26, s{sCH}, 12
  s_add_u32 s26, s26, s25
  s_add_u32 s26, s26, {XX0}
  v_add_u32 v{vEP}, s26, v{vEP}
  s_lshl_b32 s25, s3, 7
  s_lshl_b32 s26, s{sCH}, 6
  s_add_u32 s43, s25, s26
  s_mul_i32 s25, s44, {8*TS32}
  s_add_u32 s43, s43, s25
  s_add_u32 s43, s43, {WS_X1C}
  v_and_b32 v22, 255, v0
  v_min_u32 v22, 223, v22
  v_lshlrev_b32 v22, 6, v22
  s_mov_b32 s42, {WS_F1B}
  s_waitcnt lgkmcnt(0)""")
    E("  s_barrier")
    E.stamp()
    def reg(n, half=None): return a_(4 * n, 4) if half is None else a_(4 * n + 2 * half, 2)
    CA_ = lambda c: 112 + 4 * (c % 4)
    T = 64
    HD, XV, PK, Y0 = T, T + 4, T + 8, T + 24
    def pre(s_):
        o = L_()
        o(f"  ds_read_b64 {v(PK,2)}, v21 offset:{1024*s_}")
        o(f"  ds_read_b64 {v(PK+2,2)}, v{vEP} offset:{1024*s_} ;@eh{s_}")
        o.append(E.W(lg=f'eh{s_}'))
        for j in range(2): unpack2(o, HD + 2 * j, HD + 2 * j + 1, PK + j)
        for j in range(4): o(f"  v_mul_f32 v{HD+j}, s48, v{HD+j}")
        for j in range(2): unpack2(o, XV + 2 * j, XV + 2 * j + 1, PK + 2 + j)
        for j in range(4): o(f"  v_cvt_pk_bf16_f32 v{HD+j}, 0, v{HD+j}")
        return o
    def post(s_):
        o = L_()
        O1, O2 = PK + 4 + 4 * (s_ & 1), PK + 6 + 4 * (s_ & 1)
        r = vEXR0 if s_ % 2 == 0 else vEXR1
        for q in range(4): o(f"  ds_read_b128 {v(Y0+4*q,4)}, v{r} offset:{QS*q} ;@er{s_}_{q}")
        o(f"  s_add_u32 s44, s43, {16*TS32*s_}\n  s_add_u32 s45, s43, {16*TS32*s_ + WS_X1 - WS_X1C}")
        o.append(E.W(lg=f'er{s_}_1'))
        def rnd(dst=None):
            if dst is not None:
                for j in range(2): o(f"  v_cvt_pk_bf16_f32 v{dst+j}, v{Y0+2*j}, v{Y0+2*j+1}")
            for j in range(4): o(f"  v_cvt_pk_bf16_f32 v{Y0+j}, 0, v{Y0+j}")
        for j in range(4): o(f"  v_add_f32 v{Y0+j}, v{Y0+j}, v{Y0+4+j}")
        o.append(E.W(lg=f'er{s_}_3'))
        for j in range(4): o(f"  v_add_f32 v{Y0+8+j}, v{Y0+8+j}, v{Y0+12+j}")
        for j in range(4): o(f"  v_add_f32 v{Y0+j}, v{Y0+j}, v{Y0+8+j}")
        rnd()
        for j in range(4): o(f"  v_add_f32 v{Y0+j}, v{Y0+j}, v{HD+j}")
        rnd()
        for j in range(4): o(f"  v_mul_f32 v{Y0+j}, v{Y0+j}, v{vGA}")
        rnd()
        for j in range(4): o(f"  v_add_f32 v{Y0+j}, v{Y0+j}, v{XV+j}")
        rnd(O1)
        for j in range(4): o(f"  v_mul_f32 v{Y0+j}, v{Y0+j}, v{vC1B}")
        for j in range(2): o(f"  v_cvt_pk_bf16_f32 v{O2+j}, v{Y0+2*j}, v{Y0+2*j+1}")
        o(f"  buffer_store_dwordx2 {v(O2,2)}, v{vST}, s[16:19], s44 offen sc1")
        o(f"  buffer_store_dwordx2 {v(O1,2)}, v{vST}, s[16:19], s45 offen sc1")
        return o
    def gacheck():
        E.wait(vm='ga')
        E.spin(tagcheck([GA + 1, GA + 3, GA + 5, GA + 7], Y0), gl + ["  s_waitcnt vmcnt(0)"], sleep=1)
        E(f"""  v_add_f32 v{vGA}, v{GA}, v{GA+2}
  v_add_f32 v{vC1B}, v{GA+4}, v{GA+6}
  v_cvt_pk_bf16_f32 v{vGA}, 0, v{vGA}
  v_cvt_pk_bf16_f32 v{vC1B}, 0, v{vC1B}
  v_add_f32 v{vC1B}, 1.0, v{vC1B}
  v_cvt_pk_bf16_f32 v{vC1B}, 0, v{vC1B}""")
    f1l = "  buffer_load_dword v23, v22, s[16:19], s42 offen sc1 ;@f1b"
    def f1check():
        E.wait(vm='f1b')
        E.spin([f"  v_cmp_ne_u32 vcc, s{NON}, v23"], [f1l, "  s_waitcnt vmcnt(0)"], sleep=1)
    hi = Q(); lo = Q()
    hi.add(2, pre(0))
    for s_ in range(3):
        e = ENDC[2 * s_ + 1]
        hi.add(e + 2, send(CA_, s_, E))
        extra = [f1check] if s_ == 2 else []
        hi.add(e + 3, extra + [bar(E, s_)] + ([gacheck] if s_ == 0 else []) + post(s_) + ([f1l] if s_ == 0 else []) + pre(s_ + 1))
        for nb, items in hooks.get(s_, []): hi.add(nb, items)
    conv_loop(E, reg, CA_, hi, lo, float(os.environ.get('CH_PER', 5.0)))
    E(send(CA_, 3, E))
    E.stamp()
    E(bar(E, 3))
    E(post(3))
```

```python
from common import *
RP = 272; QS = 32 * RP
CBK = 4 * QS
O_KC = 3328; KCS = QS + 64
HH0 = 2 * CBK
XX0 = HH0 + 2 * 4608
WB0 = XX0 + 2 * 4096
O_AUG = WB0 + 18 * 4096
O_STG = O_AUG + 1824
O_S2 = O_AUG + 2048
LDS = 163840
def wblock(ks): return WB0 + 4096 * (ks if ks < 18 else ks - 18)
DPP16 = ['quad_perm:[1,0,3,2]', 'quad_perm:[2,3,0,1]', 'row_half_mirror', 'row_mirror']
EX56 = "  s_mov_b32 exec_hi, 0x00ffffff"
EXALL = "  s_mov_b64 exec, -1"
NT = os.environ.get('NT', 'nt')
NTW = os.environ.get('NTW', '')
PX = 50; NR = 30
sW, sHL, sCW = 4, 33, 32

def non_load(): return f"  buffer_load_dword v{NR}, off, s[20:23], 0 sc1 ;@non"

def get_nonce(E):
    E.wait(vm='non')
    E.spin([f"  v_cmp_eq_u32 vcc, 0, v{NR}"], [non_load(), "  s_waitcnt vmcnt(0)"], sleep=1)
    E(f"  v_readfirstlane_b32 s{NON}, v{NR}")

def ln_finish(o, S, Q):
    o(f"""  v_mul_f32 v{S}, {fh(1.0/448)}, v{S}
  v_mul_f32 v{Q}, {fh(1.0/448)}, v{Q}
  v_fma_f32 v{Q}, -v{S}, v{S}, v{Q}
  v_max_f32 v{Q}, 0, v{Q}
  v_cvt_pk_bf16_f32 v{Q}, 0, v{Q}
  v_add_f32 v{Q}, {fh(1e-5)}, v{Q}
  v_cvt_pk_bf16_f32 v{Q}, 0, v{Q}
  v_sqrt_f32 v{Q}, v{Q}
  v_cvt_pk_bf16_f32 v{Q}, v{Q}, v{S}""")

def produce_c(E, T):
    X = PX
    E.wait(vm='px')
    for j in range(7): unpack2(E, T + 2 * j, T + 2 * j + 1, X + j + (j > 3))
    S, Q, Q2 = T + 14, T + 16, T + 18
    E(f"  v_pk_add_f32 {v(S,2)}, {v(T,2)}, {v(T+2,2)}")
    E(f"  v_pk_mul_f32 {v(Q,2)}, {v(T,2)}, {v(T,2)}")
    E(f"  v_pk_mul_f32 {v(Q2,2)}, {v(T+2,2)}, {v(T+2,2)}")
    for j in range(2, 7):
        q = Q if j % 2 == 0 else Q2
        E(f"  v_pk_add_f32 {v(S,2)}, {v(S,2)}, {v(T+2*j,2)}")
        E(f"  v_pk_fma_f32 {v(q,2)}, {v(T+2*j,2)}, {v(T+2*j,2)}, {v(q,2)}")
    E(f"""  v_pk_add_f32 {v(Q,2)}, {v(Q,2)}, {v(Q2,2)}
  v_add_f32 v{S}, v{S}, v{S+1}
  v_add_f32 v{Q}, v{Q}, v{Q+1}
  s_lshl_b32 s25, s{sW}, 3""")
    fl = [f"  s_add_u32 s25, s25, {O_STG}", f"  v_lshl_add_u32 v{T}, v3, 2, s25", "  s_nop 0", "  s_nop 0"]
    for m, f in zip(DPP16, fl):
        E(f"  v_add_f32_dpp v{S}, v{S}, v{S} {m} row_mask:0xf bank_mask:0xf")
        E(f"  v_add_f32_dpp v{Q}, v{Q}, v{Q} {m} row_mask:0xf bank_mask:0xf")
        E(f)
    E(f"""  v_add_f32_dpp v{S}, v{S}, v{S} row_bcast:15 row_mask:0xa bank_mask:0xf
  v_add_f32_dpp v{Q}, v{Q}, v{Q} row_bcast:15 row_mask:0xa bank_mask:0xf""")
    ln_finish(E, S, Q)
    E(f"""  s_mov_b32 exec_lo, 0x10000
  s_mov_b32 exec_hi, 0x10000
  ds_write_b32 v{T}, v{Q}
{EXALL}
  s_waitcnt lgkmcnt(0)
  s_barrier""")

def produce_h(E, T):
    X = PX; n = E.name
    E(f"""  s_lshl_b32 s26, s2, 6
  v_lshrrev_b32 v{T+16}, 2, v2
  v_mul_u32_u24 v{T+16}, {4*PS}, v{T+16}
  v_and_b32 v{T+17}, 3, v2
  v_lshl_add_u32 v{T+16}, v{T+17}, 4, v{T+16}
  s_mul_i32 s25, s{sCW}, {56*PS}
  s_add_u32 s25, s25, s26
  s_add_u32 s25, s25, {WS_XT}""")
    get_nonce(E)
    E(EX56)
    for u in range(4):
        E(f"""  v_mov_b32 v{T+4*u}, v{X+u}
  v_mov_b32 v{T+4*u+1}, v{NR}
  v_mov_b32 v{T+4*u+2}, v{X+4+u}
  v_mov_b32 v{T+4*u+3}, v{NR}
  buffer_store_dwordx4 {v(T+4*u,4)}, v{T+16}, s[16:19], s25 offen sc1""")
        if u < 3: E(f"  s_add_u32 s25, s25, {PS}")
    E(f"""{EXALL}
  v_lshlrev_b32 v{X}, 3, v{T+17}
  v_add_u32 v{X}, {O_STG}, v{X}
  v_mov_b32 v{X+5}, v{NR}
  v_mov_b32 v{X+7}, v{NR}
  s_barrier
  s_cmp_lg_u32 s{sW}, 4
  s_cbranch_scc1 {n}_PD""")
    E.A(f"""  ds_read_b64 {v(X+2,2)}, v{X}
  s_mov_b64 exec, 15
  s_waitcnt lgkmcnt(0)
  v_mov_b32 v{X+4}, v{X+2}
  v_mov_b32 v{X+6}, v{X+3}
  buffer_store_dwordx4 {v(X+4,4)}, v6, s[16:19], s26 offen offset:{WS_LN1} sc1
{EXALL}
{n}_PD:""")

def produce(E, T):
    E(f"  s_cmp_lg_u32 s{sHL}, 0\n  s_cbranch_scc1 M_PH")
    H = E.fork('MP')
    produce_c(E, T)
    E("  s_branch MP_PD\nM_PH:")
    produce_h(H, T)
    E.slow += H.slow

def entry(A, E):
    A(f"""  s_cmp_ge_u32 s2, {NAUX+NMAIN}
  s_cbranch_scc1 END""")
    if PROF: A("  s_memrealtime s[68:69]\n  s_memtime s[72:73]")
    A(f"""  s_load_dwordx4 s[64:67], s[0:1], 128
  s_load_dwordx16 s[32:47], s[0:1], 0
  s_load_dwordx16 s[48:63], s[0:1], 64
  s_memrealtime s[28:29]
  v_lshrrev_b32 v1, 6, v0
  v_and_b32 v2, 63, v0               ; lane
  v_readfirstlane_b32 s4, v1         ; wave
  v_lshrrev_b32 v3, 5, v2            ; lane/32
  v_and_b32 v4, 31, v2
  v_mul_u32_u24 v4, 28, v4
  v_mul_u32_u24 v5, 896, v3
  v_add_u32 v4, v4, v5
  v_and_b32 v5, 3, v2
  v_mul_u32_u24 v5, 1792, v5
  v_lshrrev_b32 v6, 2, v2
  v_min_u32 v6, 13, v6
  v_lshl_add_u32 v5, v6, 4, v5
  v_lshlrev_b32 v6, 4, v2            ; lane*16
  s_and_b32 s15, s4, 3
  s_mul_i32 s24, s15, 1792
  s_mul_i32 s25, s15, 224
  s_cmp_lt_u32 s4, 4
  s_cselect_b64 vcc, -1, 0
  s_cselect_b32 s24, s24, s25
  s_cselect_b32 s27, 12, 896
  s_mul_i32 s26, s2, 7168
  s_add_u32 s24, s24, s26
  s_add_u32 s27, s27, s24
  v_cndmask_b32 v4, v5, v4, vcc
  s_mov_b32 s{BUD}, 20000
  s_sub_u32 s3, s2, {NAUX}
  s_and_b32 s12, s3, 7
  s_lshr_b32 s6, s3, 3               ; j
  s_mul_i32 s13, s6, 37
  s_lshr_b32 s13, s13, 8             ; j/7
  s_mul_i32 s5, s13, 7
  s_sub_u32 s14, s6, s5              ; j%7
  s_and_b32 s5, s12, 1
  s_lshl_b32 s5, s5, 2
  s_add_u32 s5, s5, s13              ; tq
  s_lshr_b32 s6, s12, 1
  s_mul_i32 s6, s6, 7
  s_add_u32 s6, s6, s14              ; fq
  s_and_b32 s25, s4, 1               ; ch
  s_lshl_b32 s25, s25, 2
  s_lshr_b32 s26, s4, 1              ; u
  s_add_u32 s7, s25, s26
  s_lshl_b32 s25, s3, 3
  s_add_u32 s25, s25, s7
  s_lshl_b32 s25, s25, 7             ; d*512 + u*128
  v_lshl_add_u32 v7, v2, 1, s25
  s_or_b32 s26, s2, s4
  s_waitcnt lgkmcnt(0)""")
    srd(A, 20, 64, 256)
    srd(A, 8, 32, L * 896)
    A(f"""  s_cmp_lg_u32 s26, 0
  s_cbranch_scc1 NOTAG
  s_lshl_b32 s28, s28, 1
  s_or_b32 s28, s28, 1
  v_mov_b32 v8, s28
  s_mov_b64 exec, 1
  buffer_store_dword v8, off, s[20:23], 0 sc1
  s_mov_b64 exec, -1
NOTAG:""")
    E(f"""  buffer_load_dwordx4 {v(PX,4)}, v4, s[8:11], s24 offen {NT} ;@px
  buffer_load_dwordx4 {v(PX+4,4)}, v4, s[8:11], s27 offen {NT} ;@px""")
    srd(A, 16, 66, WS_END)
    A(f"""  s_mov_b32 s{sCW}, s15
  s_lshr_b32 s{sHL}, s4, 2
  s_cmp_lt_u32 s2, {NAUX}
  s_cbranch_scc1 AUX""")

vA, vB, vEP, vEXW, vEXR0, vEXR1, vST, vWD, vWT, vHW, vSN = 8, 9, 10, 11, 12, 13, 14, 15, 16, 17, 20
vGA, vC1B = 18, 19
SENT = 24
G = 32
sU, sCH, sCB = 27, 28, 29

def front(E):
    RAW = 58
    for j in range(6): E(f"  global_load_ushort v{RAW+j}, v7, s[{34+2*j}:{35+2*j}] {NT} ;@par")
    E(f"""  s_lshl_b32 s27, s3, 2
  s_load_dword s46, s[46:47], s27
  s_load_dword s48, s[48:49], s27
  s_lshr_b32 s{sU}, s4, 1
  s_and_b32 s{sCH}, s4, 1
  s_mul_i32 s{sCB}, s{sCH}, {CBK}
  s_cmp_lt_u32 s{sCW}, 2
  s_cselect_b32 s52, s52, s54
  s_cselect_b32 s53, s53, s55""")
    srd(E, 12, 52, 448 * 3584)
    T = 64
    E(f"""  s_lshl_b32 s25, s{sU}, 6
  v_add_u32 v1, s25, v2              ; t
  v_lshlrev_b32 v21, 3, v1
  v_sub_u32 v21, 2047, v21
  v_cvt_f32_u32 v22, v21""")
    for e in range(12): E(f"  v_add_f32 v{T+e}, {fh(-float(e))}, v22" if e else f"  v_mov_b32 v{T}, v22")
    for j in range(6): E(f"  v_cvt_pk_bf16_f32 v{T+12+j}, v{T+2*j}, v{T+1+2*j}")
    for e in range(11):
        if e % 2 == 0: E(f"  v_and_b32 v{T+e}, 0x7fff, v{T+12+e//2}")
        else: E(f"  v_bfe_u32 v{T+e}, v{T+12+e//2}, 16, 15")
    for e in range(11):
        E(f"""  v_subrev_u32 v{T+e}, {0x4300-128}, v{T+e}
  v_subrev_u32 v{G+e}, {e}, v21
  v_min_i32 v{G+e}, 127, v{G+e}
  v_max3_i32 v{G+e}, v{G+e}, v{T+e}, 0
  v_lshrrev_b32 v{T+e}, 4, v{G+e}
  v_add_u32 v{G+e}, v{G+e}, v{T+e}
  v_lshl_add_u32 v{G+e}, v{G+e}, 2, s{sCB}""")
    KW, KR, P0, P1, P2, P3 = 43, 44, 45, 46, 47, 48
    E(f"""  s_mul_i32 s25, s7, {QS}
  v_and_b32 v21, 31, v2              ; m / b
  v_mul_u32_u24 v{KR}, {RP}, v21
  v_add_u32 v{KR}, s25, v{KR}
  v_lshl_add_u32 v{KR}, v3, 4, v{KR}
  v_lshlrev_b32 v{P0}, 3, v21
  v_lshl_add_u32 v{P0}, v3, 2, v{P0}     ; slot 8b+4g
  v_cmp_eq_u32 vcc, 0, v3
  v_lshlrev_b32 v22, 2, v21
  v_lshlrev_b32 v23, 1, v21
  v_add_u32 v22, 256, v22
  v_add_u32 v23, 384, v23
  v_cndmask_b32 v{P1}, v23, v22, vcc
  v_cndmask_b32 v22, 64, 2, vcc
  v_add_u32 v{P2}, v{P1}, v22
  v_lshl_add_u32 v{P3}, v3, 7, v21
  v_add_u32 v{P3}, 512, v{P3}""")
    for p in (P0, P1, P2, P3):
        E(f"  v_lshrrev_b32 v22, 4, v{p}\n  v_add_u32 v{p}, v{p}, v22\n  v_lshl_add_u32 v{p}, v{p}, 2, s25")
    E(f"""  v_add_u32 v{vEXW}, s25, v6
  v_lshrrev_b32 v21, 3, v2           ; row
  v_and_b32 v22, 7, v2               ; chunk
  v_mul_u32_u24 v{vSN}, {TS32}, v21
  v_lshl_add_u32 v{vSN}, v22, 4, v{vSN}
  v_and_b32 v23, 2, v21              ; 2*((row>>1)&1)
  v_xor_b32 v22, v22, v23
  s_lshr_b32 s25, s{sCW}, 1
  s_lshl_b32 s25, s25, 2
  v_xor_b32 v22, s25, v22
  v_mul_u32_u24 v{vWD}, 3584, v21
  v_lshl_add_u32 v{vWD}, v22, 4, v{vWD}
  v_mov_b32 v{SENT}, -1
  v_mov_b32 v{SENT+1}, -1
  v_mov_b32 v{SENT+2}, -1
  v_mov_b32 v{SENT+3}, -1
  v_and_b32 v21, 15, v2              ; i / n
  v_lshrrev_b32 v22, 4, v2           ; g4
  v_and_b32 v23, 3, v21
  v_sub_u32 v23, 3, v23
  v_mul_u32_u24 v{vA}, {KCS}, v23
  v_lshrrev_b32 v23, 2, v21
  v_lshlrev_b32 v23, 3, v23
  v_sub_u32 v{vA}, v{vA}, v23
  v_lshl_add_u32 v{vA}, v22, 4, v{vA}
  s_lshl_b32 s25, s{sU}, 6
  s_sub_u32 s26, s{sCB}, s25
  s_add_u32 s26, s26, {O_KC + 4056 - 64*60}
  v_add_u32 v{vA}, s26, v{vA}
  v_lshlrev_b32 v{vB}, 5, v21
  v_lshl_add_u32 v{vEP}, v22, 3, v{vB}     ; 32n + 8g
  v_lshl_add_u32 v{vB}, v22, 4, v{vB}
  s_mul_i32 s26, s{sCH}, 4608
  s_sub_u32 s26, s26, s25
  s_add_u32 s26, s26, {HH0 + 512 - 32 - 256}
  v_add_u32 v{vB}, s26, v{vB}
  v_lshrrev_b32 v23, 1, v21
  v_mul_u32_u24 v{vST}, {TS32}, v23
  v_and_b32 v23, 1, v21
  v_lshl_add_u32 v{vST}, v23, 5, v{vST}
  v_lshl_add_u32 v{vST}, v22, 3, v{vST}""")
    E(non_load())
    E(f"""  ; scalar offsets : s34 xT, s35 sentinel x1, s37 W soffset, s38 W lds offset, s39 mod, s47 stats
  s_mul_i32 s35, s{sHL}, {WS_X1 - WS_X1C}
  s_mul_i32 s25, s{sCW}, {16*TS32}
  s_add_u32 s35, s35, s25
  s_lshl_b32 s25, s3, 7
  s_add_u32 s35, s35, s25
  s_add_u32 s35, s35, {WS_X1C}
  s_mul_i32 s37, s{sCH}, {8*3584}
  s_lshl_b32 s25, s6, 7
  s_add_u32 s37, s37, s25
  s_lshl_b32 s38, s{sCW}, 10
  s_mul_i32 s25, s{sHL}, {16*3584}
  s_add_u32 s40, s37, s25
  s_lshl_b32 s41, s4, 10
  s_lshl_b32 s39, s3, 4
  s_add_u32 s39, s39, {WS_MOD}
  s_add_u32 s36, s39, {MODH}
  s_waitcnt lgkmcnt(0)
  s_lshl_b32 s47, s4, 11
  s_mul_i32 s49, s7, {QS}
  s_mul_i32 s34, s3, {PS}
  s_add_u32 s34, s34, s47
  s_add_u32 s34, s34, {WS_XT}
  s_cmp_eq_u32 s{sCH}, 0
  s_cselect_b32 s25, 16, 0
  s_lshl_b32 s46, s46, s25
  s_and_b32 s46, s46, 0xffff0000     ; log_dt
  s_lshl_b32 s48, s48, s25
  s_and_b32 s48, s48, 0xffff0000     ; Dskip
  v_mov_b32 v31, {fh(LOG2E)}
  v_mul_f32 v31, s46, v31
  v_exp_f32 v31, v31
  s_mov_b32 s46, {fh(INV2PI_HI)}
  v_cvt_pk_bf16_f32 v31, v31, v31
  v_and_b32 v31, 0xffff0000, v31     ; dt
  s_lshl_b32 s25, s4, 9
  s_add_u32 s25, s25, {HH0}
  v_lshl_add_u32 v{vHW}, v2, 2, s25
  v_mov_b32 v64, 0
  v_mov_b32 v65, 0
  v_mov_b32 v66, 0
  v_mov_b32 v67, 0
  v_and_b32 v21, 31, v2
  v_lshlrev_b32 v21, 4, v21
  v_mul_u32_u24 v22, 4608, v3
  v_add_u32 v21, v21, v22
  v_add_u32 v21, {HH0}, v21
  ds_write_b128 v21, v[64:67]""")
    E.stamp('f')
    def wdma2(i):
        return [f"  s_add_u32 m0, s41, {WB0 + 8192*i}",
                f"  s_add_u32 s25, s40, {32*3584*i}",
                f"  buffer_load_dwordx4 v{vWD}, s[12:15], s25 offen {NTW} lds ;@w{i}", "  s_mov_b32 m0, s49"]
    sn = []
    for j in range(2): sn.append([f"  s_add_u32 s25, s35, {8*TS32*j}", f"  buffer_store_dwordx4 {v(SENT,4)}, v{vSN}, s[16:19], s25 offen sc1 ;@sn"])
    w1 = [wdma2(i) for i in range(9)]
    Kp = L_()
    Kp.append(E.W(vm='par'))
    AL, PP, BR, BI, CR, CI = RAW, RAW + 1, RAW + 2, RAW + 3, RAW + 4, RAW + 5
    TH, TL, CBR, CBI, MX, EE, FF = 96, 97, 98, 99, 100, 101, 102
    for r in range(RAW, RAW + 6): Kp(f"  v_lshlrev_b32 v{r}, 16, v{r}")
    Kp(f"""  v_mul_f32 v{AL}, v{AL}, v31
  v_mul_f32 v{PP}, v{PP}, v31
  v_mul_f32 v{BR}, v{BR}, v31
  v_mul_f32 v{BI}, v{BI}, v31
  v_mul_f32 v{AL}, {fh(LOG2E)}, v{AL}
  v_mul_f32 v{TH}, s46, v{PP}
  v_mul_f32 v{CBR}, v{CR}, v{BR}
  v_mul_f32 v{CBI}, v{CR}, v{BI}
  v_fma_f32 v{TL}, v{PP}, s46, -v{TH}
  v_fma_f32 v{CBR}, -v{CI}, v{BI}, v{CBR}
  v_fma_f32 v{CBI}, v{CI}, v{BR}, v{CBI}
  v_fmac_f32 v{TL}, {fh(INV2PI_LO)}, v{PP}
  v_max_f32 v{MX}, |v{CBR}|, |v{CBI}|""")
    Wr = {1: 106, 256: 108, 512: 110, 1024: 112, 8: 114, 16: 116}
    for n_, Lw in enumerate((1, 8, 256)):
        w = Wr[Lw]
        e_, f_ = (AL, TH) if Lw == 1 else (EE, FF)
        if Lw != 1: Kp(f"  v_mul_f32 v{EE}, {fh(float(Lw))}, v{AL}\n  v_mul_f32 v{FF}, {fh(float(Lw))}, v{TH}")
        Kp(f"""  v_exp_f32 v{EE}, v{e_}
  v_fract_f32 v{FF}, v{f_}
  v_max_f32_dpp v{MX}, v{MX}, v{MX} {DPP16[n_]} row_mask:0xf bank_mask:0xf""")
        if Lw == 1: Kp(f"  v_add_f32 v{FF}, v{FF}, v{TL}")
        else: Kp(f"  v_fmac_f32 v{FF}, {fh(float(Lw))}, v{TL}")
        Kp(f"  v_cos_f32 v{w}, v{FF}\n  v_sin_f32 v{w+1}, v{FF}")
        if n_ == 2: Kp(f"  v_max_f32_dpp v{MX}, v{MX}, v{MX} {DPP16[3]} row_mask:0xf bank_mask:0xf")
        Kp(f"  v_mul_f32 v{w}, v{w}, v{EE}")
        Kp(f"  v_mul_f32 v{w+1}, {'-' if Lw == 8 else ''}v{w+1}, v{EE}")
    Kp(f"""  v_readlane_b32 s42, v{MX}, 0
  v_readlane_b32 s43, v{MX}, 16
  v_readlane_b32 s44, v{MX}, 32
  v_readlane_b32 s45, v{MX}, 48""")
    cmul(Kp, Wr[512], Wr[256], Wr[256]); cmul(Kp, Wr[16], Wr[8], Wr[8])
    Kp(f"""  s_max_u32 s42, s42, s43
  s_max_u32 s44, s44, s45
  s_max_u32 s42, s42, s44
  s_lshr_b32 s42, s42, 23
  s_sub_i32 s43, 140, s42
  s_sub_i32 s42, s42, 140""")
    cmul(Kp, Wr[1024], Wr[512], Wr[512])
    npub = len(Kp)
    X = lambda a: 64 + 2 * a
    Kp("  s_mov_b32 m0, s49")
    Kp(f"  v_ldexp_f32 v{X(0)}, v{CBR}, s43\n  v_ldexp_f32 v{X(0)+1}, v{CBI}, s43")
    CV = 118; cnt = [0]
    def emit(src, row):
        t = CV + cnt[0] % 4; cnt[0] += 1
        Kp(f"  v_cvt_pk_f16_f32 v{t}, v{src}, v{src+1}")
        Kp(f"  ds_write_addtid_b32 v{t} offset:{row*RP}")
    plan = [(1, 0, 1), (8, 0, 256), (12, 0, 512), (16, 0, 1024), (2, 1, 1), (14, 8, 512), (17, 8, 1024), (3, 2, 1),
            (18, 12, 1024), (9, 2, 256), (20, 16, 1024), (4, 3, 1), (19, 14, 1024), (5, 4, 1), (10, 4, 256), (13, 4, 512),
            (6, 5, 1), (15, 10, 512), (7, 6, 1), (11, 6, 256)]
    prev = 0
    for (a, src, w) in plan:
        cmul(Kp, X(a), X(src), Wr[w]); emit(X(prev), prev); prev = a
    emit(X(prev), prev)
    AF, BF = 64, 96
    for ks in range(8): Kp(f"  ds_read_b128 {a_(AF+4*ks,4)}, v{KR} offset:{32*ks}")
    Y = lambda j: 64 + 2 * (j % 6)
    Kp(f"  v_mov_b32 v31, 0x3c00\n  ds_write_addtid_b32 v31")
    emit(Wr[8], 1); emit(Wr[16], 2)
    src = {1: Wr[8], 2: Wr[16]}
    for j in range(3, 32):
        cmul(Kp, Y(j), src[j - 2], Wr[16]); src[j] = Y(j)
        if j > 3: emit(Y(j - 1), j - 1)
    emit(Y(31), 31)
    for ks in range(8): Kp(f"  ds_read_b128 {a_(BF+4*ks,4)}, v{KR} offset:{32*ks} ;@bf{ks}")
    ACC = 112
    fill = L_()
    fill(f"""  v_lshlrev_b32 v49, 4, v1           ; t*16
  v_add_u32 v49, s{sCB}, v49
  v_cmp_ne_u32 vcc, 255, v1
  v_bfe_u32 v21, v2, 4, 1            ; th
  v_bfe_u32 v22, v2, 2, 2            ; r
  s_mov_b64 s[44:45], vcc
  v_lshl_add_u32 v23, v21, 1, v3
  v_lshlrev_b32 v{vWT}, 10, v23
  v_lshl_add_u32 v{vWT}, v22, 7, v{vWT}
  v_lshrrev_b32 v22, 1, v22
  v_lshl_add_u32 v22, v21, 1, v22
  v_xor_b32 v22, s{sCW}, v22
  v_lshl_add_u32 v{vWT}, v22, 5, v{vWT}
  v_and_b32 v22, 3, v2
  v_lshl_add_u32 v{vWT}, v22, 3, v{vWT}
  v_add_u32 v{vWT}, {WB0}, v{vWT}
  v_bfe_u32 v21, v2, 2, 2
  v_mul_u32_u24 v21, {KCS}, v21
  v_lshl_add_u32 v21, v22, 4, v21
  v_add_u32 v21, s{sCB}, v21
  v_mov_b32 v76, 0
  v_mov_b32 v77, 0
  v_mov_b32 v78, 0
  v_mov_b32 v79, 0""")
    for ks in range(8):
        Kp.append(E.W(lg=f'bf{ks}'))
        Kp(f"  v_mfma_f32_32x32x16_f16 {v(ACC,16)}, {a_(AF+4*ks,4)}, {a_(BF+4*ks,4)}, {'0' if ks == 0 else v(ACC,16)}")
        n = 2 if ks < 7 else 12
        Kp += fill[:n]; del fill[:n]
    Kp += fill
    for r in range(12): Kp(f"  v_ldexp_f32 v{ACC+r}, v{ACC+r}, s42")
    Kp(f"""  ds_write2_b32 v{P0}, v{ACC}, v{ACC+1} offset0:0 offset1:1
  ds_write2_b32 v{P0}, v{ACC+2}, v{ACC+3} offset0:2 offset1:3
  ds_write2_b32 v{P1}, v{ACC+4}, v{ACC+5} offset0:0 offset1:1
  ds_write2_b32 v{P2}, v{ACC+6}, v{ACC+7} offset0:0 offset1:1
  ds_write2_b32 v{P3}, v{ACC+8}, v{ACC+9} offset0:0 offset1:34
  ds_write2_b32 v{P3}, v{ACC+10}, v{ACC+11} offset0:68 offset1:102 ;@pt""")
    XT = lambda i: 80 + 4 * i; ST = lambda i: 88 + 4 * i; SA, CA = 96, 104
    crit = []
    for i in range(2):
        crit.append(f"  buffer_load_dwordx4 {v(XT(i),4)}, v6, s[16:19], s34 offen offset:{1024*i} sc1 ;@st")
        crit.append(f"  buffer_load_dwordx4 {v(ST(i),4)}, v6, s[16:19], s47 offen offset:{1024*i} sc1 ;@st")
    for h, sr in enumerate((39, 36)):
        crit.append(f"  buffer_load_dwordx4 {v(SA+4*h,4)}, off, s[16:19], s{sr} sc1 ;@st")
        crit.append(f"  buffer_load_dwordx4 {v(CA+4*h,4)}, off, s[16:19], s{sr} offset:3584 sc1 ;@st")
    NW0 = int(os.environ.get('K_W0', 0))
    E(w1[:NW0])
    npub = int(os.environ.get('K_PUB', npub))
    E(Kp[:npub])
    E.stamp('f')
    produce(E, 64)
    E.stamp('f')
    ncr = int(os.environ.get('K_CRIT', 70))
    rest = Kp[npub:]
    bg = w1[NW0:] + sn
    if os.environ.get('NOBG'): late = bg; bg = []
    weave(E, rest[:len(rest)-ncr], bg, float(os.environ.get('K_EVERY', 14)), start=int(os.environ.get('K_START', 40)))
    E.stamp('f')
    weave(E, rest[len(rest)-ncr:], crit, 3)
    E.stamp('f')
    if os.environ.get('NOBG'): E.wait(lg='pt')
    else: E.wait(vm=['sn', 'w8'], lg='pt')
    E("  s_barrier")
    E.stamp('f')
    R = 112
    for q in range(4): E(f"  ds_read_b128 {v(R+4*q,4)}, v49 offset:{QS*q} ;@pr{q}")
    E(f"""  ds_write_b128 v21, v[76:79] offset:{O_KC+4096}
""")
    E.wait(lg='pr1')
    E(f"  v_pk_add_f32 {v(R,2)}, {v(R,2)}, {v(R+4,2)}\n  v_pk_add_f32 {v(R+2,2)}, {v(R+2,2)}, {v(R+6,2)}")
    E.wait(lg='pr3')
    E(f"""  v_pk_add_f32 {v(R+8,2)}, {v(R+8,2)}, {v(R+12,2)}
  v_pk_add_f32 {v(R+10,2)}, {v(R+10,2)}, {v(R+14,2)}
  v_cmp_gt_u32 vcc, 204, v1
  v_pk_add_f32 {v(R,2)}, {v(R,2)}, {v(R+8,2)}
  v_pk_add_f32 {v(R+2,2)}, {v(R+2,2)}, {v(R+10,2)}
  s_and_b64 exec, exec, vcc
  ds_write_b128 v49, {v(R,4)} ;@ft
{EXALL}""")
    E.wait(lg='ft')
    E("  s_barrier")
    D0 = 112
    for e in range(11): E(f"  ds_read_b32 v{D0+e}, v{G+e} ;@g{e}")
    E.stamp('f')
    E.wait(vm='st')
    get_nonce(E)
    tags = [r + k for r in [XT(0), XT(1), ST(0), ST(1), SA, SA + 4, CA, CA + 4] for k in (1, 3)]
    E.spin(tagcheck(tags, 64), crit + ["  s_waitcnt vmcnt(0)"], sleep=1)
    E.stamp('fb'[0]); E.stamp('b')
    E(f"""  s_lshl_b32 s25, s3, 6
  s_add_u32 s25, s25, {WS_F1B}
  s_cmp_lg_u32 s4, 3
  s_cbranch_scc1 M_NOF
  s_mov_b64 exec, 1""")
    E.A(f"  buffer_store_dword v{NR}, off, s[16:19], s25 sc1")
    E("  s_mov_b64 exec, -1\nM_NOF:")
    kx = L_()
    kx.append(E.W(lg='g10'))
    for e in (8, 9, 10): kx(f"  v_cndmask_b32 v{D0+e}, 0, v{D0+e}, s[44:45]")
    KP = 32
    for c in range(4):
        for j in range(4): kx(f"  v_cvt_pk_bf16_f32 v{KP+4*c+j}, v{D0+2*j+c}, v{D0+2*j+c+1}")
        kx(f"  ds_write_b128 v49, {v(KP+4*c,4)} offset:{O_KC + KCS*c}")
    hp = L_()
    bc = "op_sel:[0,0] op_sel_hi:[1,0]"
    XF = 64; RR = 72; PK = 50
    xs = lambda k: XT(k // 2) + 2 * (k % 2); ss = lambda k: ST(k // 2) + 2 * (k % 2)
    for k in range(4): hp(f"  v_lshlrev_b32 v{RR+2*k}, 16, v{ss(k)}")
    for k in range(4): hp(f"  v_rcp_f32 v{RR+2*k}, v{RR+2*k}")
    for k in range(4): hp(f"  v_and_b32 v{ss(k)}, 0xffff0000, v{ss(k)}")
    for k in range(4): unpack2(hp, XF + 2 * k, XF + 2 * k + 1, xs(k))
    hp(f"""  v_add_f32 v{SA}, v{SA}, v{SA+4}
  v_add_f32 v{SA+1}, v{SA+2}, v{SA+6}
  v_add_f32 v{CA}, v{CA}, v{CA+4}
  v_add_f32 v{CA+1}, v{CA+2}, v{CA+6}
  v_cvt_pk_bf16_f32 v{SA+1}, v{SA}, v{SA+1}
  v_cvt_pk_bf16_f32 v{CA+1}, v{CA}, v{CA+1}
  v_lshlrev_b32 v{SA}, 16, v{SA+1}
  v_and_b32 v{SA+1}, 0xffff0000, v{SA+1}
  v_lshlrev_b32 v{CA}, 16, v{CA+1}
  v_and_b32 v{CA+1}, 0xffff0000, v{CA+1}
  v_add_f32 v{CA}, 1.0, v{CA}
  v_add_f32 v{CA+1}, 1.0, v{CA+1}
  s_mov_b32 s42, 0x05040100
  v_cvt_pk_bf16_f32 v{CA+1}, v{CA}, v{CA+1}
  s_mov_b32 s43, 0x07060302
  v_lshlrev_b32 v{CA}, 16, v{CA+1}
  v_and_b32 v{CA+1}, 0xffff0000, v{CA+1}""")
    def rnd():
        for k in range(4): hp(f"  v_cvt_pk_bf16_f32 v{PK+k}, v{XF+2*k}, v{XF+2*k+1}")
        for k in range(4): unpack2(hp, XF + 2 * k, XF + 2 * k + 1, PK + k)
    for k in range(4): hp(f"  v_pk_add_f32 {v(XF+2*k,2)}, {v(XF+2*k,2)}, {v(ss(k),2)} {bc} neg_lo:[0,1] neg_hi:[0,1]")
    rnd()
    for k in range(4): hp(f"  v_pk_mul_f32 {v(XF+2*k,2)}, {v(XF+2*k,2)}, {v(RR+2*k,2)} {bc}")
    rnd()
    for k in range(4): hp(f"  v_pk_mul_f32 {v(XF+2*k,2)}, {v(XF+2*k,2)}, {v(CA,2)}")
    rnd()
    for k in range(4): hp(f"  v_pk_add_f32 {v(XF+2*k,2)}, {v(XF+2*k,2)}, {v(SA,2)}")
    for c in range(2):
        for i in range(2): hp(f"  v_cvt_pk_bf16_f32 v{PK+2*c+i}, v{XF+4*i+c}, v{XF+4*i+2+c}")
        for i in range(2): hp(f"  ds_write_b32 v{vHW}, v{PK+2*c+i} offset:{c*4608 + 512 + 256*i}")
    for c in range(2):
        for i in range(2): hp(f"  v_perm_b32 v{PK+4+2*c+i}, v{XT(i)+2}, v{XT(i)}, s{42+c}")
        for i in range(2): hp(f"  ds_write_b32 v{vHW}, v{PK+4+2*c+i} offset:{XX0 - HH0 + c*4096 + 256*i}")
    E(kx); E(hp)
    E.stamp('f')
```

```python
from common import *
from m_front import *
import m_conv
from m_conv import WF, wread, Q

KCP = lambda j: (j // 4) * CBK + O_KC + KCS * (j % 4)
WBK = lambda b: WB0 + 4096 * b
PAGES = [[WBK(b) for b in range(10, 17)],
         [KCP(j) for j in range(7)],
         [WBK(17), KCP(7), HH0, HH0 + 4096, HH0 + 8192, HH0 + 12288, WBK(0)],
         [WBK(b) for b in range(1, 8)]]
def page(k, p): return PAGES[k % 4][p]
PART = 8704
REDE, REDL = 0, 8 * PART
EPS = {2: [0], 3: [1], 4: [2, 3], 5: [4], 6: [5], 7: [6]}
PERM = [sorted(range(7), key=lambda g: ((j - g % 4) % 4, g)) for j in range(4)]
PERMC = [sum(g << (4 * i) for i, g in enumerate(p)) for p in PERM]

def tile_scalars(E):
    E(f"""  s_lshr_b32 s25, s3, 3
  s_mul_i32 s26, s25, 37
  s_lshr_b32 s26, s26, 8             ; j2 = j/7
  s_mul_i32 s58, s26, 7
  s_sub_u32 s58, s25, s58            ; j%7 = ct64 = producer group
  s_mov_b32 s59, s26
  s_and_b32 s25, s58, 3              ; rot""")
    for k in range(4): E(f"  s_add_u32 s{50+k}, s5, {8*k}")
    for k in range(4):
        E(f"""  s_add_u32 s26, s25, {k}
  s_and_b32 s26, s26, 3
  s_lshl_b32 s26, s26, 3
  s_add_u32 s26, s26, 32
  s_add_u32 s{54+k}, s26, s5""")

def g2_scalars(E, kh):
    E(f"""  s_mov_b32 s60, {PERMC[0]:#x}
  s_cmp_eq_u32 s59, 1
  s_cselect_b32 s60, {PERMC[1]:#x}, s60
  s_cmp_eq_u32 s59, 2
  s_cselect_b32 s60, {PERMC[2]:#x}, s60
  s_cmp_eq_u32 s59, 3
  s_cselect_b32 s60, {PERMC[3]:#x}, s60
  s_mul_i32 s25, s{sCW}, {28*1024}
  s_add_u32 s25, s25, {2048*kh}
  s_mul_i32 s61, s58, {2*112*1024}
  s_add_u32 s61, s61, s25
  s_add_u32 s61, s61, {WS_WD}
  s_and_b32 s26, s3, 7               ; tq2
  s_lshl_b32 s44, s59, 3
  s_add_u32 s24, s44, s26            ; early t32
  s_mul_i32 s44, s24, {112*1024}
  s_add_u32 s44, s44, s25
  s_add_u32 s44, s44, {WS_H}
  s_add_u32 s45, s44, {32*112*1024}""")

def grp(i, base, dst=25):
    return [f"  s_bfe_u32 s{dst}, s60, {0x40000 + 4*i:#x}", f"  s_lshl_b32 s{dst}, s{dst}, 12", f"  s_add_u32 s{dst}, s{dst}, s{base}"]
WD = lambda i, e, c: 16 * i + 8 * e + 4 * c
def wdload(i):
    o = grp(i, 61) + [f"  s_add_u32 s26, s25, {112*1024}"]
    r = []
    for e in range(2):
        for c in range(2):
            r.append(f"  buffer_load_dwordx4 {a_(WD(i,e,c),4)}, v6, s[16:19], s{25+c} offen offset:{1024*e} sc1 ;@wd{i}")
    return o + r

def final_setup(E, helper):
    srd(E, 20, 62, L * D * 2)
    E(f"""  v_and_b32 v8, 15, v2               ; dq
  v_lshrrev_b32 v9, 4, v2            ; tk
  v_lshlrev_b32 v11, 8, v8
  v_lshl_add_u32 v11, v9, 1, v11
  s_mul_i32 s40, s24, {TS32}
  s_lshl_b32 s25, s58, 12
  s_add_u32 s40, s40, s25
  s_add_u32 s40, s40, {WS_X1}
  s_lshl_b32 s25, s4, 3
  s_add_u32 s46, s40, s25
  s_add_u32 s46, s46, {32*TS32}""")
    E(x1loads(16, 46, 'xl'))
    if helper:
        E(f"  s_lshl_b32 s25, s{sCW}, 4\n  s_add_u32 s46, s40, s25\n  s_add_u32 s47, s46, 8")
        E(x1loads(20, 46, 'xe0')); E(x1loads(24, 47, 'xe1'))
    E(f"""  v_lshlrev_b32 v10, 4, v8
  v_add_u32 v10, {O_AUG}, v10
  v_mul_u32_u24 v12, 272, v9
  v_lshl_add_u32 v12, v8, 4, v12
  v_mul_u32_u24 v13, 896, v9
  v_lshl_add_u32 v13, v8, 3, v13
  s_mul_i32 s41, s24, {32*896}
  s_lshl_b32 s25, s58, 7
  s_add_u32 s41, s41, s25
  v_and_b32 v14, 31, v2
  v_mul_u32_u24 v14, 272, v14
  v_lshl_add_u32 v14, v3, 4, v14
  s_mul_i32 s25, s4, {PART}
  v_add_u32 v14, s25, v14
  v_add_u32 v15, {REDL}, v14
  s_mul_i32 s25, s4, {4*896}
  s_add_u32 s40, s41, s25
  s_add_u32 s40, s40, {1024*896}
  s_mul_i32 s25, s4, {4*272}
  s_add_u32 s25, s25, {REDL}
  v_add_u32 v8, s25, v12""")
    if helper:
        E(f"""  s_mul_i32 s25, s{sCW}, {8*896}
  s_add_u32 s46, s41, s25
  s_add_u32 s47, s46, {4*896}
  s_mul_i32 s25, s{sCW}, {8*272}
  v_add_u32 v9, s25, v12
  v_add_u32 v12, {4*272}, v9""")
def gbcheck(E, GB, gl, tmp):
    E.wait(vm='gb')
    E.spin(tagcheck([GB + 2 * j + 1 for j in range(8)], tmp), gl + ["  s_waitcnt vmcnt(0)"], sleep=1)
    for j in range(4): E(f"  v_add_f32 v{GB+j}, v{GB+2*j}, v{GB+8+2*j}")
    for j in range(4): E(f"  v_cvt_pk_bf16_f32 v{GB+j}, 0, v{GB+j}")
def x1loads(X1, sbase, tag):
    o = [f"  v_mov_b32 v{X1+i}, 0" for i in range(4)]
    o += [f"  buffer_load_short_d16_hi v{X1+i}, v11, s[16:19], s{sbase} offen offset:{64*i} sc1 ;@{tag}" for i in range(4)]
    return o
def reduce_out(E, vaddr, R, GB, X1, sout, tag, xtag):
    for w in range(8): E(f"  ds_read_b128 {v(R+4*w,4)}, v{vaddr} offset:{PART*w} ;@{tag}{w}")
    for a, b in ((0, 1), (2, 3), (4, 5), (6, 7), (0, 2), (4, 6), (0, 4)):
        E.wait(lg=f'{tag}{b}')
        for j in range(4): E(f"  v_add_f32 v{R+4*a+j}, v{R+4*a+j}, v{R+4*b+j}")
    for j in range(4): E(f"  v_cvt_pk_bf16_f32 v{R+j}, 0, v{R+j}")
    for j in range(4): E(f"  v_mul_f32 v{R+j}, v{R+j}, v{GB+j}")
    for j in range(4): E(f"  v_cvt_pk_bf16_f32 v{R+j}, 0, v{R+j}")
    E.wait(vm=xtag)
    for j in range(4): E(f"  v_add_f32 v{R+j}, v{R+j}, v{X1+j}")
    for j in range(2): E(f"  v_cvt_pk_bf16_f32 v{R+4+j}, v{R+2*j}, v{R+2*j+1}")
    E(f"  buffer_store_dwordx2 {v(R+4,2)}, v13, s[20:23], s{sout} offen")
def wpart(vaddr, acc, c, tag):
    return [f"  ds_write_b128 v{vaddr}, {v(acc+4*q,4)} offset:{128*c + 32*q} ;@{tag}" for q in range(4)]

def g2_phase(E, A2, HE, HL, nre, pre_e, fillE, fillL, midE):
    def eload(n):
        i, e = n // 2, n % 2
        o = grp(i, 44, 34) if e == 0 else []
        return o + [f"  buffer_load_dwordx4 {HE(n % nre)}, v6, s[16:19], s34 offen offset:{1024*e} sc1 ;@he{n}"]
    def lload(i):
        r = HL(i % 4)
        return grp(i, 45, 36 + i % 4) + lre(i)
    def lre(i):
        r = HL(i % 4)
        return [f"  buffer_load_dwordx4 {v(r+4*e,4)}, v6, s[16:19], s{36 + i % 4} offen offset:{1024*e} sc1 ;@hl{i}" for e in range(2)]
    p = pre_e
    return eload, lload, lre

def rest(A, C, H, stage):
    m_conv.conv_compute(C, {})
    E = C
    XS = lambda n: 28 + 4 * (n % 6)
    ET = 52; ACC = lambda k: 64 + 16 * (k % 3)
    AUGA, AUGB = 112, 116; SM, SSD, RR = 120, 121, 122
    vX = [22, 23, 17]
    for ks in range(21, 28): E(wread(ks))
    tile_scalars(E)
    E(f"""  v_bfe_u32 v8, v2, 2, 1
  v_mul_u32_u24 v8, 896, v8
  v_lshl_add_u32 v8, v3, 4, v8
  v_add_u32 v8, {O_AUG}, v8
  v_bfe_u32 v9, v2, 2, 2             ; r
  v_lshl_add_u32 v9, v3, 3, v9       ; 8g + r
  v_lshlrev_b32 v22, 6, v9
  v_bfe_u32 v9, v2, 4, 1
  v_lshl_add_u32 v22, v9, 5, v22
  v_and_b32 v9, 3, v2
  v_lshl_add_u32 v22, v9, 3, v22
  v_add_u32 v23, 61440, v22
  v_add_u32 v17, 122880, v22
  v_and_b32 v10, 31, v2
  v_lshlrev_b32 v10, 2, v10
  v_add_u32 v10, {O_S2}, v10
  v_cmp_eq_u32 s[42:43], 0, v3
  s_lshl_b32 s35, s6, 2
  s_add_u32 s35, s35, s4
  s_lshl_b32 s35, s35, 10
  s_add_u32 s35, s35, {WS_H}         ; H base (+ t32*112K)
  v_mov_b32 v{AUGA+2}, 0
  v_mov_b32 v{AUGA+3}, 0
  v_mov_b32 v{AUGB+2}, 0
  v_mov_b32 v{AUGB+3}, 0""")
    AU = ACC(2)
    for n in range(5): E(f"  ds_read_b128 {v(XS(n),4)}, v8 offset:{32*n} ;@au{n}")
    for ks in range(28):
        E.wait(lg=[f'au{ks}', f'wf{ks}'])
        E(f"  v_mfma_f32_32x32x16_bf16 {v(AU,16)}, {v(XS(ks),4)}, {a_(WF(ks),4)}, {'0' if ks == 0 else v(AU,16)}")
        if ks + 5 < 28: E(f"  ds_read_b128 {v(XS(ks+5),4)}, v8 offset:{32*(ks+5)} ;@au{ks+5}")
    E.stamp()
    augfin = L_()
    augfin(f"""  v_cndmask_b32_e64 v{ET}, v{AU}, -v{AU}, s[42:43]
  v_cvt_pk_bf16_f32 v{ET+1}, 0, v{ET}
  v_sub_f32 v{ET}, v{ET}, v{ET+1}
  v_cvt_pk_bf16_f32 v{ET+2}, 0, v{ET}
  v_sub_f32 v{ET}, v{ET}, v{ET+2}
  v_cvt_pk_bf16_f32 v{AUGA+1}, v{ET}, 0
  v_lshrrev_b32 v{ET+1}, 16, v{ET+1}
  v_or_b32 v{AUGA}, v{ET+1}, v{ET+2}""")
    def xread(n):
        k, ks = n // 28, n % 28
        ad = page(k, ks // 4) + 1024 * (ks % 4)
        b = vX[ad // 61440]; o = ad % 61440
        return [f"  ds_read_b64_tr_b16 {v(XS(n),2)}, v{b} offset:{o}",
                f"  ds_read_b64_tr_b16 {v(XS(n)+2,2)}, v{b} offset:{o+256} ;@x{n}"]
    def epilogue(k):
        o = L_(); a = ACC(k); t = ET; out = ET + 8
        o(f"  ds_read_b32 v{SM}, v10 offset:{128*k} ;@s2_{k}")
        o(f"  s_mul_i32 s34, s{50+k}, {112*1024}\n  s_add_u32 s34, s34, s35")
        o.append(None); o.append(None); o.append(None); o.append(None)
        o.append(E.W(lg=f's2_{k}'))
        o(f"""  v_lshlrev_b32 v{SSD}, 16, v{SM}
  v_lshrrev_b32 v{AUGB+1}, 16, v{SM}
  v_and_b32 v{SM}, 0xffff, v{SM}
  v_rcp_f32 v{RR}, v{SSD}
  v_cndmask_b32_e64 v{AUGB+1}, v{SM}, v{AUGB+1}, s[42:43]
  v_lshl_or_b32 v{AUGB}, v{AUGB+1}, 16, v{AUGB+1}
  v_mul_f32 v{RR}, {fh(-LOG2E)}, v{RR}""")
        o.append(None)
        o(f"  v_mfma_f32_32x32x16_bf16 {v(a,16)}, {v(AUGA,4)}, {v(AUGB,4)}, {v(a,16)}")
        o += [None] * 8
        for j in range(8): o(f"  v_mul_f32 v{t+j}, v{a+j}, v{RR}")
        for j in range(8): o(f"  v_exp_f32 v{t+j}, v{t+j}")
        for j in range(8): o(f"  v_fma_f32 v{t+j}, v{t+j}, v{SSD}, v{SSD}")
        for j in range(8): o(f"  v_rcp_f32 v{t+j}, v{t+j}")
        for j in range(8): o(f"  v_mul_f32 v{t+j}, v{t+j}, v{a+8+j}")
        for j in range(4): o(f"  v_cvt_pk_bf16_f32 v{out+j}, v{t+2*j}, v{t+2*j+1}")
        o(f"  buffer_store_dwordx4 {v(out,4)}, v6, s[16:19], s34 offen sc1 ;@h{k}")
        return o
    PF = 4
    E("  s_waitcnt lgkmcnt(0)\n  s_barrier")
    E.stamp()
    E("  s_setprio 2")
    for n in range(PF): E(xread(n))
    for k in range(8):
        pend = []
        if k == 0: pend = [None] * 4 + augfin
        for e in EPS.get(k, []): pend += epilogue(e)
        if k == 6:
            sc = L_(); g2_scalars(sc, 1); pend += sc
        per = -(-len(pend) // 26)
        for ks in range(28):
            n = 28 * k + ks
            if ks == 28 - PF and k < 7:
                if k == 5: E.wait(vm='h3')
                E("  s_barrier")
            if ks % 2 == 0: E.wait(lg=f'x{min(n+1, 223)}')
            E(f"  v_mfma_f32_32x32x16_bf16 {v(ACC(k),16)}, {a_(WF(ks),4)}, {v(XS(n),4)}, {'0' if ks == 0 else v(ACC(k),16)}")
            if n + PF < 224: E(xread(n + PF))
            E(pend[:per]); pend = pend[per:]
            if k == 7 and ks % 4 == 3 and stage == 'C': E(wdload(ks // 4))
        if k in (3,): E.stamp()
    E.stamp()
    E("  s_barrier")
    if stage == 'C':
        A2 = {(0, 0): 64, (1, 0): 96, (0, 1): 80, (1, 1): 112}
        HE = lambda n: a_(112 + 4 * n, 4) if n < 4 else v(28 + 4 * (n - 4), 4)
        HL = lambda sl: 28 + 8 * sl
        eload, lload, lre = g2_phase(E, A2, HE, HL, 10, 0, None, None, None)
        for n in range(10): E(eload(n))
    E(epilogue(7))
    E.stamp()
    if stage == 'C':
        g2_body(E, A2, HE, HL, 10, eload, lload, lre, False)
    E.stamp(); E.stamp_flush()
    A("END:\n  s_endpgm\nHELPER:")
    E = H
    TB_ = 40
    au = L_()
    au(f"""  s_mul_i32 s25, s{sCW}, 896
  s_add_u32 s50, s25, {WS_MOD + 3*448*8}
  s_add_u32 s51, s50, {MODH}""")
    aul = [f"  buffer_load_dwordx4 {v(TB_+4*j,4)}, v6, s[16:19], s{50 + j%2} offen offset:{3584*(j//2)} sc1 ;@aut" for j in range(4)]
    au += aul
    def aufin():
        E.wait(vm='aut')
        E(EX56)
        E.spin(tagcheck([TB_ + 2 * j + 1 for j in range(8)], 56), aul + ["  s_waitcnt vmcnt(0)"], sleep=1)
        E(f"""  v_add_f32 v{TB_}, v{TB_}, v{TB_+4}
  v_add_f32 v{TB_+2}, v{TB_+2}, v{TB_+6}
  v_add_f32 v{TB_+8}, v{TB_+8}, v{TB_+12}
  v_add_f32 v{TB_+10}, v{TB_+10}, v{TB_+14}
  v_cvt_pk_bf16_f32 v{TB_}, v{TB_}, v{TB_+2}
  v_cvt_pk_bf16_f32 v{TB_+8}, 0, v{TB_+8}
  v_cvt_pk_bf16_f32 v{TB_+10}, 0, v{TB_+10}
  s_mul_i32 s25, s{sCW}, 224
  v_add_f32 v{TB_+8}, 1.0, v{TB_+8}
  v_add_f32 v{TB_+10}, 1.0, v{TB_+10}
  s_add_u32 s25, s25, {O_AUG}
  v_lshl_add_u32 v{TB_+1}, v2, 2, s25
  v_cvt_pk_bf16_f32 v{TB_+8}, v{TB_+8}, v{TB_+10}    ; c1b pair
  ds_write_b32 v{TB_+1}, v{TB_} offset:896
  ds_write_b32 v{TB_+1}, v{TB_+8}
{EXALL}""")
    def xdma(k):
        o = [[f"  s_mul_i32 s{8+k%4}, s{50+k}, {TS32}", f"  s_add_u32 s{8+k%4}, s{8+k%4}, s35"]]
        return o + xre(k)
    def xre(k):
        return [[f"  s_add_u32 m0, s38, {page(k,p)}", f"  s_add_u32 s25, s{8+k%4}, {4096*p}",
                 f"  buffer_load_dwordx4 v6, s[16:19], s25 offen sc1 lds ;@xt{k}"] for p in range(7)]
    VR = 84
    vV = [16, 17, 20]
    def xrd(k):
        o = []
        for p in range(7):
            ad = page(k, p)
            o.append(f"  ds_read_b128 {v(VR+4*p,4)}, v{vV[ad >> 16]} offset:{ad & 0xffff}")
        return o
    def xval(k):
        E.wait(vm=f'xt{k}')
        chk = xrd(k) + ["  s_waitcnt lgkmcnt(0)"]
        r = list(range(VR, VR + 28))
        while len(r) > 1:
            nx = []
            while r:
                g = r[:3]; r = r[3:]
                if len(g) == 3: chk.append(f"  v_max3_u32 v{g[0]}, v{g[0]}, v{g[1]}, v{g[2]}")
                elif len(g) == 2: chk.append(f"  v_max_u32 v{g[0]}, v{g[0]}, v{g[1]}")
                nx.append(g[0])
            r = nx
        chk.append(f"  v_cmp_eq_u32 vcc, -1, v{VR}")
        E.spin(chk, [x for g in xre(k) for x in g] + ["  s_waitcnt vmcnt(0)"], sleep=4)
    pre = L_(); tile_scalars(pre)
    pre(f"""  s_add_u32 s35, s38, {WS_X1C}
  v_add_u32 v16, s38, v6
  v_add_u32 v17, 0x10000, v16
  v_add_u32 v20, 0x20000, v16""")
    X0AT = int(os.environ.get('X0AT', 62))
    hooks = {1: [(0, au)], 2: [(0, [aufin] + pre), (X0AT, xdma(0) + xdma(1))]}
    m_conv.conv_helper(E, hooks)
    E.stamp()
    S2 = 32
    def s2l(h): return f"  buffer_load_dwordx2 {v(S2+2*h,2)}, v21, s[16:19], s{40+h} offen sc1 ;@s2{h}"
    E(f"""  v_and_b32 v21, 31, v2
  v_lshlrev_b32 v22, 2, v21
  v_lshlrev_b32 v21, 3, v21
  v_add_u32 v22, {O_S2}, v22
  s_lshl_b32 s34, s6, 2
  s_add_u32 s34, s34, s{sCW}
  s_lshl_b32 s34, s34, 10
  s_add_u32 s34, s34, {WS_H}
  s_mul_i32 s25, s5, {112*1024}
  s_add_u32 s34, s34, s25""")
    def stats(k):
        E(f"  s_lshl_b32 s40, s{50+k}, 8\n  s_add_u32 s40, s40, {WS_LN2}")
        ld = f"  buffer_load_dwordx2 {v(S2,2)}, v21, s[16:19], s40 offen sc1 ;@s2_{k}"
        return ld
    def statfin(k, ld):
        E.wait(vm=f's2_{k}')
        E.spin([f"  v_cmp_ne_u32 vcc, s{NON}, v{S2+1}"], [ld, "  s_waitcnt vmcnt(0)"], sleep=2)
        E(f"  ds_write_b32 v22, v{S2} offset:{128*k}")
    def sent(c): return [f"  s_add_u32 s25, s34, {8*112*1024*c}", f"  buffer_store_dwordx4 {v(SENT,4)}, v6, s[16:19], s25 offen sc1 ;@hs"]
    g2_scalars(E, 0)
    fal = "  buffer_load_dword v23, v19, s[16:19], s42 offen sc1 ;@fa"
    E(f"""  v_min_u32 v19, 27, v2
  v_lshlrev_b32 v19, 6, v19
  s_mov_b32 s42, {WS_FA}""")
    xval(0)
    E("  s_barrier")
    E.stamp()
    need_stats = {2: [0], 3: [1], 4: [2, 3], 5: [4], 6: [5], 7: [6], 8: [7]}
    wd_at = {3: [0, 1], 4: [2, 3], 5: [4, 5], 6: [6]}
    for k in range(1, 9):
        lds_ = [(j, stats(j)) for j in need_stats.get(k, [])[:1]]
        for j, ld in lds_: E(ld)
        if 4 <= k + 1 < 8: E(xre(k + 1)[6])
        if k == 1: E(xdma(2)); E(xdma(3)); E([sent(c) for c in range(4, 8)])
        elif k + 2 < 8: E(xdma(k + 2)[:7])
        if k == 2 and stage == 'C': E(fal)
        if k == 3 and stage == 'C':
            E.wait(vm='fa')
            E.spin([f"  v_cmp_ne_u32 vcc, s{NON}, v23"], [fal, "  s_waitcnt vmcnt(0)"], sleep=4)
        for j, ld in lds_: statfin(j, ld)
        for j in need_stats.get(k, [])[1:]:
            ld = stats(j); E(ld); statfin(j, ld)
        if k < 8: xval(k)
        if stage == 'C':
            for i in wd_at.get(k, []): E(wdload(i))
        if k == 4: E.wait(vm='hs')
        if k == 5 and stage == 'C':
            GB = 40
            E(f"""  v_and_b32 v36, 15, v2
  v_lshlrev_b32 v37, 4, v36
  v_lshlrev_b32 v36, 5, v36
  v_add_u32 v37, {O_AUG}, v37
  s_lshl_b32 s46, s58, 9
  s_add_u32 s46, s46, {WS_MOD + 5*448*8}
  s_add_u32 s47, s46, {MODH}""")
            gl = [f"  buffer_load_dwordx4 {v(GB+4*j,4)}, v36, s[16:19], s{46 + j//2} offen offset:{16*(j%2)} sc1 ;@gb" for j in range(4)]
            E(gl)
        if k == 7 and stage == 'C':
            gbcheck(E, GB, gl, 56)
            E(f"  ds_write_b128 v37, {v(GB,4)}")
        if k == 8 and stage == 'C':
            fhl = "  buffer_load_dword v23, v19, s[16:19], s42 offen sc1 ;@fh"
            E(f"  s_and_b32 s42, s3, 7\n  s_mul_i32 s42, s42, {28*64}\n  s_add_u32 s42, s42, {WS_FH}")
            E(fhl); E.wait(vm='fh')
            E.spin([f"  v_cmp_ne_u32 vcc, s{NON}, v23"], [fhl, "  s_waitcnt vmcnt(0)"], sleep=2)
            A2 = {(0, 0): 64, (1, 0): 80, (0, 1): 96, (1, 1): 112}
            HE = lambda n: a_(112 + 4 * n, 4) if n < 4 else v(28 + 4 * (n - 4), 4)
            HL = lambda sl: 28 + 8 * sl
            eload, lload, lre = g2_phase(E, A2, HE, HL, 10, 0, None, None, None)
            E("  s_waitcnt lgkmcnt(0)")
            for n in range(10): E(eload(n))
        E("  s_waitcnt lgkmcnt(0)\n  s_barrier")
        if k == 6:
            E(f"""  s_mul_i32 s25, s5, 28
  s_add_u32 s25, s25, s6
  s_lshl_b32 s25, s25, 6
  s_add_u32 s25, s25, {WS_FH}
  s_cmp_lg_u32 s4, 7
  s_cbranch_scc1 MH_NOF
  s_mov_b64 exec, 1""")
            E.A(f"  buffer_store_dword v{NR}, off, s[16:19], s25 sc1")
            E("  s_mov_b64 exec, -1\nMH_NOF:")
        if k in (4,): E.stamp()
    E.stamp()
    if stage == 'C':
        g2_body(E, A2, HE, HL, 10, eload, lload, lre, True)
    E.stamp(); E.stamp_flush()
    A("  s_endpgm")

def g2_body(E, A2, HE, HL, nre, eload, lload, lre, helper):
    final_setup(E, helper)
    for n in range(14):
        i, e = n // 2, n % 2
        E.wait(vm=[f'he{n}', f'wd{i}'])
        for c in range(2):
            cc = '0' if n == 0 else v(A2[c, 0], 16)
            E(f"  v_mfma_f32_32x32x16_bf16 {v(A2[c,0],16)}, {a_(WD(i,e,c),4)}, {HE(n % nre)}, {cc}")
        if n + nre < 14: E(eload(n + nre))
        if n in (5, 7, 9): E(lload((n - 5) // 2))
        if n == 10: E(lload(3))
    E.stamp()
    for i in range(7):
        r = HL(i % 4)
        E.wait(vm=f'hl{i}')
        chk = [f"  v_max3_u32 v60, v{r}, v{r+1}, v{r+2}", f"  v_max3_u32 v61, v{r+3}, v{r+4}, v{r+5}",
               f"  v_max3_u32 v60, v60, v{r+6}, v{r+7}", "  v_max_u32 v60, v60, v61", "  v_cmp_eq_u32 vcc, -1, v60"]
        E.spin(chk, lre(i) + ["  s_waitcnt vmcnt(0)"], sleep=2)
        for e in range(2):
            for c in range(2):
                cc = '0' if (i == 0 and e == 0) else v(A2[c, 1], 16)
                E(f"  v_mfma_f32_32x32x16_bf16 {v(A2[c,1],16)}, {a_(WD(i,e,c),4)}, {v(r+4*e,4)}, {cc}")
                if i == 0 and e == 1: E(wpart(14, A2[c, 0], c, 'pe'))
        if i + 4 < 7: E(lload(i + 4))
        if i == 1 and not helper:
            E.wait(lg='pe'); E("  s_barrier")
    E.stamp()
    GB = 28
    E(f"  ds_read_b128 {v(GB,4)}, v10")
    E(wpart(15, A2[0, 1], 0, 'pl')); E(wpart(15, A2[1, 1], 1, 'pl'))
    if helper:
        E.wait(lg='pl'); E("  s_barrier")
        reduce_out(E, 9, 64, GB, 20, 46, 'ra', 'xe0')
        reduce_out(E, 12, 96, GB, 24, 47, 'rb', 'xe1')
    E.wait(lg='pl'); E("  s_barrier")
    reduce_out(E, 8, 64, GB, 16, 40, 'rc', 'xl')
```

```python
import sys
sys.path.insert(0, 'gen3')
from common import *
from m_front import *
import m_conv, m_aux
NAME = 'adaLN_cond__ssm_conv_s4__glu_gated_glu__prompt'
def generate(out, stage):
    ref = open(f'cdna_kernels/{NAME}.s.ref').read().split('\n')
    head = [l for l in ref if l.startswith(';') and '@launch' not in l and 'Override launch' not in l and 'grid=ceil' not in l]
    A = Prog()
    K = NAME + '_kernel'
    A(f".globl {K}\n.p2align 8\n.type {K},@function\n{K}:")
    E = Em(A, 'M'); E.nst = 1
    entry(A, E)
    E0 = E.fork('X')
    front(E)
    A(f"  s_cmp_lg_u32 s{sHL}, 0\n  s_cbranch_scc1 HELPER")
    EC = E.fork('MC'); EH = E.fork('MH')
    if stage == 'A':
        m_conv.conv_compute(EC, {})
        EC.stamp(); EC.stamp_flush()
        A("END:\n  s_endpgm\nHELPER:")
        m_conv.conv_helper(EH, {})
        EH.stamp(); EH.stamp_flush()
        A("  s_endpgm")
    else:
        import m_glu
        m_glu.rest(A, EC, EH, stage)
    for e in (E, EC, EH): e.flush_slow()
    m_aux.aux(A, E0)
    n = A.fix()
    print('nops added', n, 'lines', len(A.lines))
    txt = '\n'.join(head) + '\n'
    txt += f"; @launch grid=({NAUX+NMAIN},1,1) block=(512,1,1) lds={LDS}\n"
    txt += '.amdgcn_target "amdgcn-amd-amdhsa--gfx950"\n.text\n' + A.text()
    txt += '.section .rodata,"a"\n.p2align 6\n' + descriptor(K, 256, 102, 128)
    open(out, 'w').write(txt)
if __name__ == '__main__':
    generate(sys.argv[1], sys.argv[2] if len(sys.argv) > 2 else 'A')
```
